```python
import torch

def _softmax(x, axis=-1):
    return torch.softmax(x, dim=axis)
def _gelu(x):
    return torch.nn.functional.gelu(x, approximate="tanh")
def _silu(x):
    return torch.nn.functional.silu(x)
def _sigmoid(x):
    return torch.sigmoid(x)
def _layernorm(x, axis=-1, eps=1e-5):
    m = x.mean(dim=axis, keepdim=True)
    v = x.var(dim=axis, keepdim=True, unbiased=False)
    return (x - m) / torch.sqrt(v + eps)
def _scatter_add(tgt, idx, src, axis=0):
    return tgt.clone().index_add_(axis, idx, src)
def _segment_sum(src, seg, n):
    out = torch.zeros((n,) + src.shape[1:], dtype=src.dtype)
    return out.index_add_(0, seg, src)
def _pad(x, pw):
    flat = tuple(v for pair in reversed(pw) for v in pair)
    return torch.nn.functional.pad(x, flat)

kernel_name = 'standalone__mpnn_edge_mlp__graph'

def setup_inputs():

    _w = (lambda a: (lambda t: t.to(torch.bfloat16) if t.is_floating_point() else t)(torch.as_tensor(a)))
    N, deg, D, De = 10000, 16, 256, max(16, 1)
    E = N * deg
    return {
        "x": _w((lambda *s: torch.randn(*s, dtype=torch.bfloat16) * 0.05)(N, D)),
        "e_attr": _w((lambda *s: torch.randn(*s, dtype=torch.bfloat16) * 0.4)(E, De)),
        "src": _w((lambda lo, hi, *s: torch.randint(lo, hi, s))(0, N, E).to(torch.int64)),
        "dst": _w((lambda lo, hi, *s: torch.randint(lo, hi, s))(0, N, E).to(torch.int64)),
        "w_msg": _w((lambda *s: torch.randn(*s, dtype=torch.bfloat16) * 0.4)(2 * D + De, D)),
        "w_upd": _w((lambda *s: torch.randn(*s, dtype=torch.bfloat16) * 0.05)(2 * D, D)),
    }

def reference(x, e_attr, src, dst, w_msg, w_upd):
    N, D = x.shape
    m_in = torch.concatenate([x[src], x[dst], e_attr], axis=-1)
    msg = _silu(m_in @ w_msg)
    agg = _segment_sum(msg, dst, N)
    return _silu(torch.concatenate([x, agg], axis=-1) @ w_upd)
```

```python
class Asm:
    def __init__(self):
        self.L = []
    def __call__(self, s):
        for line in s.strip("\n").split("\n"):
            line = line.strip()
            if not line: continue
            if line.endswith(":"): self.L.append(line)
            else: self.L.append("    " + line)
    def text(self): return "\n".join(self.L) + "\n"

def vr(b, n): return f"v[{b}:{b+n-1}]"
def sr(b, n): return f"s[{b}:{b+n-1}]"

N = 10000; E = 160000
ROWB = 512
NBYTES = N * ROWB
WS_P = 0; WS_Q = 0x500000; WS_U = 0xA00000
WS_CELL = 0xF00000
WS_WU2 = 0x1100000
WS_W3 = 0x1120000
WS_DBG = 0x1200000
WS_END = 0x1300000
NCH = 32; CHE = 5000
LOG2E_NEG = 0xBFB8AA3B
LN2_NEG = 0xBF317218

def srd(a, d, base, off, nrec):
    if off:
        a(f"s_add_u32 s{d}, s{base}, {hex(off)}")
        a(f"s_addc_u32 s{d+1}, s{base+1}, 0")
    else:
        a(f"s_mov_b32 s{d}, s{base}")
        a(f"s_mov_b32 s{d+1}, s{base+1}")
    a(f"s_mov_b32 s{d+2}, {hex(nrec)}")
    a(f"s_mov_b32 s{d+3}, 0x20000")

def desc(name, nv, ns=102):
    acc = (nv + 3) // 4 * 4
    return f""".amdhsa_kernel {name}
  .amdhsa_next_free_vgpr {nv}
  .amdhsa_next_free_sgpr {ns}
  .amdhsa_accum_offset {acc}
  .amdhsa_group_segment_fixed_size 0
  .amdhsa_kernarg_size 72
  .amdhsa_user_sgpr_count 2
  .amdhsa_user_sgpr_kernarg_segment_ptr 1
  .amdhsa_system_sgpr_workgroup_id_x 1
.end_amdhsa_kernel
"""

def stamp(a, idx, kern, dbg, sws, st, vt):
    if not dbg: return
    a(f"s_memtime s[{st}:{st+1}]")
    a(f"s_waitcnt lgkmcnt(0)")
    a(f"s_mov_b32 s{dbg + idx}, s{st}")
```

```python
from common import *
RB = 160; NRB = 63
K1_LDS = 163840
K1_GRID = 233
XCH = RB * 256
WREG = 2 * XCH

def gen_k1(dbg=False):
    a = Asm()
    a("k1_kernel:")
    a(f"s_cmp_ge_u32 s2, {K1_GRID}")
    a("s_cbranch_scc1 K1_end")
    a("s_load_dwordx4 s[4:7], s[0:1], 32")
    a("s_load_dwordx2 s[8:9], s[0:1], 0")
    a("s_load_dwordx2 s[10:11], s[0:1], 64")
    a("s_load_dwordx4 s[12:15], s[0:1], 16")
    if dbg: a("s_memrealtime s[70:71]")
    a("v_lshrrev_b32 v1, 6, v0")
    a("v_and_b32 v2, 63, v0")
    a("v_readfirstlane_b32 s3, v1")
    a("s_cmp_ge_u32 s2, 224")
    a("s_cbranch_scc1 K1_frag")
    a("s_cmp_ge_u32 s2, 192")
    a("s_cbranch_scc1 K1_part")
    a("s_and_b32 s16, s2, 63")
    a("s_lshr_b32 s17, s2, 6")
    a(f"s_cmp_ge_u32 s16, {NRB}")
    a("s_cbranch_scc1 K1_end")
    a("s_mul_i32 s18, s3, 20")
    a(f"s_mul_i32 s19, s16, {RB*ROWB}")
    a("v_lshrrev_b32 v3, 4, v2")
    a("v_add_u32 v3, s18, v3")
    a("v_and_b32 v4, 15, v2")
    for i in range(5):
        a(f"v_add_u32 v5, {4*i}, v3")
        a("v_and_b32 v6, 15, v5")
        a("v_xor_b32 v6, v6, v4")
        a("v_lshlrev_b32 v6, 4, v6")
        a("v_lshl_add_u32 v6, v5, 9, v6")
        a(f"v_add_u32 v{10+i}, s19, v6")
    a("v_lshrrev_b32 v5, 2, v2")
    a("v_and_b32 v6, 3, v2")
    a("v_lshlrev_b32 v6, 4, v6")
    a("v_lshl_add_u32 v6, v5, 9, v6")
    a("s_lshl_b32 s20, s3, 6")
    a("v_add_u32 v15, s20, v6")
    a(f"s_mul_i32 s21, s3, 10240")
    a(f"s_add_u32 s21, s21, {WREG}")
    a(f"s_mul_i32 s22, s3, 5120")
    a("s_waitcnt lgkmcnt(0)")
    srd(a, 24, 8, 0, NBYTES)
    a("s_lshl_b32 s23, s17, 17")
    a("s_add_u32 s28, s4, s23")
    a("s_addc_u32 s29, s5, 0")
    a("s_cmp_eq_u32 s17, 2")
    a("s_cselect_b32 s28, s6, s28")
    a("s_cselect_b32 s29, s7, s29")
    a(f"s_cselect_b32 s40, 1.0, {hex(LOG2E_NEG)}")
    a("s_mov_b32 s30, 0x20000")
    a("s_mov_b32 s31, 0x20000")
    a(f"s_mul_i32 s23, s17, {WS_Q}")
    a("s_add_u32 s32, s10, s23")
    a("s_addc_u32 s33, s11, 0")
    a(f"s_mov_b32 s34, {NBYTES}")
    a("s_mov_b32 s35, 0x20000")
    a("s_mov_b32 s41, s40")
    a("s_movk_i32 s36, 256")
    def xdma(X):
        for i in range(5):
            a(f"s_add_u32 m0, s22, {X*XCH + i*1024}")
            a("s_nop 0")
            a(f"buffer_load_dwordx4 v{10+i}, s[24:27], {'s36' if X else '0'} offen lds")
    def wdma(s):
        a(f"s_add_u32 m0, s21, {(s%10)*1024}")
        a(f"s_mov_b32 s37, {s*8192}")
        a(f"buffer_load_dwordx4 v15, s[28:31], s37 offen lds")
    order = []
    wdma(0); order.append("w0")
    xdma(0); order += ["x0"] * 5
    for s in range(1, 8): wdma(s); order.append(f"w{s}")
    xdma(1); order += ["x1"] * 5
    for s in range(8, 10): wdma(s); order.append(f"w{s}")
    a("v_and_b32 v5, 31, v2")
    a("v_lshrrev_b32 v6, 5, v2")
    a("v_and_b32 v7, 15, v2")
    a("v_xor_b32 v7, v7, v6")
    a("v_lshlrev_b32 v7, 4, v7")
    a("v_lshl_add_u32 v16, v5, 8, v7")
    a("v_bfe_u32 v7, v2, 2, 2")
    a("v_lshl_add_u32 v7, v6, 3, v7")
    a("v_lshlrev_b32 v7, 6, v7")
    a("v_and_b32 v8, 1, v2")
    a("v_lshl_add_u32 v7, v8, 5, v7")
    a("v_bfe_u32 v8, v2, 4, 1")
    a("v_lshl_add_u32 v7, v8, 4, v7")
    a("v_bfe_u32 v8, v2, 1, 1")
    a("v_lshl_add_u32 v7, v8, 3, v7")
    a("v_add_u32 v17, s21, v7")
    a("v_bfe_u32 v7, v2, 1, 2")
    a("v_lshlrev_b32 v8, 1, v6")
    a("v_xor_b32 v7, v7, v8")
    a("v_lshlrev_b32 v7, 4, v7")
    a("v_lshl_add_u32 v7, v5, 6, v7")
    a("v_add_u32 v18, s21, v7")
    a("v_xor_b32 v19, 16, v18")
    a("v_lshlrev_b32 v7, 4, v2")
    a("v_add_u32 v20, s21, v7")
    a("v_bfe_u32 v7, v2, 3, 2")
    a("v_and_b32 v8, 3, v2")
    a("v_xor_b32 v7, v7, v8")
    a("v_lshlrev_b32 v7, 4, v7")
    a("v_lshrrev_b32 v8, 2, v2")
    a("v_lshl_add_u32 v7, v8, 9, v7")
    a("s_add_u32 s38, s19, s20")
    a("v_add_u32 v21, s38, v7")
    ACC = 32; XF = 112; WF = 152
    def need(tag):
        last = max(i for i, t in enumerate(order) if t == tag)
        return len(order) - 1 - last
    def reads(s):
        b = s % 2
        if s % 8 != 0: a(f"v_xor_b32 v22, {(s%8)*32}, v16")
        ad = "v22" if s % 8 else "v16"
        a(f"ds_read_b64_tr_b16 {vr(WF+4*b,2)}, v17 offset:{(s%10)*1024}")
        a(f"ds_read_b64_tr_b16 {vr(WF+4*b+2,2)}, v17 offset:{(s%10)*1024+256}")
        for t in range(5):
            a(f"ds_read_b128 {vr(XF+20*b+4*t,4)}, {ad} offset:{t*8192}")
    a(f"s_waitcnt vmcnt({need('x0')})")
    a("s_barrier")
    if dbg: a("s_memrealtime s[72:73]")
    reads(0)
    for s in range(16):
        b = s % 2
        if s + 1 < 16:
            if s + 1 == 8:
                a(f"s_waitcnt vmcnt({min(need('x1'), need('w8'))})")
                a("s_barrier")
                a(f"v_add_u32 v16, {XCH}, v16")
            else:
                a(f"s_waitcnt vmcnt({need(f'w{s+1}')})")
            reads(s + 1)
            a("s_waitcnt lgkmcnt(7)" if not dbg or s > 0 else "s_waitcnt lgkmcnt(0)")
        else:
            a("s_waitcnt lgkmcnt(0)")
        if s + 10 < 16:
            wdma(s + 10); order.append(f"w{s+10}")
        for t in range(5):
            c = "0" if s == 0 else vr(ACC+16*t,16)
            a(f"v_mfma_f32_32x32x16_bf16 {vr(ACC+16*t,16)}, {vr(WF+4*b,4)}, {vr(XF+20*b+4*t,4)}, {c}")
    if dbg: a("s_memrealtime s[74:75]")
    a("s_nop 7")
    for t in range(5):
        for i in range(0, 16, 2):
            a(f"v_pk_mul_f32 {vr(ACC+16*t+i,2)}, {vr(ACC+16*t+i,2)}, s[40:41]")
        for i in range(8):
            a(f"v_cvt_pk_bf16_f32 v{XF+8*t+i}, v{ACC+16*t+2*i}, v{ACC+16*t+2*i+1}")
        a(f"ds_write_b128 v18, {vr(XF+8*t,4)} offset:{t*2048}")
        a(f"ds_write_b128 v19, {vr(XF+8*t+4,4)} offset:{t*2048}")
        a(f"ds_read_b128 {vr(ACC+16*t,4)}, v20 offset:{t*2048}")
        a(f"ds_read_b128 {vr(ACC+16*t+4,4)}, v20 offset:{t*2048+1024}")
        if t > 0:
            a("s_waitcnt lgkmcnt(4)" if not dbg else "s_waitcnt lgkmcnt(0)")
            for i in range(2):
                a(f"s_mov_b32 s37, {((t-1)*32+16*i)*ROWB}")
                a(f"buffer_store_dwordx4 {vr(ACC+16*(t-1)+4*i,4)}, v21, s[32:35], s37 offen")
    a("s_waitcnt lgkmcnt(0)")
    for i in range(2):
        a(f"s_mov_b32 s37, {(4*32+16*i)*ROWB}")
        a(f"buffer_store_dwordx4 {vr(ACC+64+4*i,4)}, v21, s[32:35], s37 offen")
    a("s_branch K1_fin")
    a("K1_part:")
    a("s_sub_u32 s16, s2, 192")
    a(f"s_mul_i32 s17, s16, {CHE*4}")
    a("v_lshlrev_b32 v3, 4, v0")
    a("s_waitcnt lgkmcnt(0)")
    a("s_add_u32 s24, s12, s17"); a("s_addc_u32 s25, s13, 0"); a(f"s_mov_b32 s26, {CHE*4}"); a("s_mov_b32 s27, 0x20000")
    a("s_add_u32 s28, s14, s17"); a("s_addc_u32 s29, s15, 0"); a(f"s_mov_b32 s30, {CHE*4}"); a("s_mov_b32 s31, 0x20000")
    srd(a, 32, 10, WS_CELL, 0x200000)
    a("s_movk_i32 s36, 0x2000"); a("s_movk_i32 s37, 0x4000")
    so = ["0", "s36", "s37"]
    for i in range(3): a(f"buffer_load_dwordx4 {vr(16+4*i,4)}, v3, s[28:31], {so[i]} offen")
    for i in range(3): a(f"buffer_load_dwordx4 {vr(32+4*i,4)}, v3, s[24:27], {so[i]} offen")
    for i in range(4): a(f"v_mov_b32 v{4+i}, -1")
    a("v_mov_b32 v8, 0")
    a("v_mov_b32 v9, 1")
    for i in range(8): a(f"ds_write_b128 v3, v[4:7] offset:{i*8192}")
    a("v_lshlrev_b32 v10, 2, v0")
    a("v_add_u32 v11, 0x10000, v10")
    a("ds_write_b32 v11, v8")
    a("s_waitcnt lgkmcnt(0)")
    a("s_barrier")
    a("s_mov_b32 s20, 0x10000")
    a(f"v_cmp_gt_u32 s[22:23], {CHE//4 - 1024}, v0") if False else None
    a(f"s_movk_i32 s21, {CHE//4 - 1024}")
    a("v_cmp_gt_u32 s[22:23], s21, v0")
    for i in range(3):
        a(f"s_waitcnt vmcnt({5-i})")
        if i == 2:
            if dbg: a("s_memrealtime s[72:73]")
            a("s_mov_b64 exec, s[22:23]")
            a("s_cbranch_execz K1_p1")
        for k in range(4):
            r = 4*i + k
            a(f"v_and_b32 v{48+r}, 0x1ff, v{16+r}")
            a(f"v_lshl_add_u32 v12, v{48+r}, 2, s20")
            a(f"ds_add_rtn_u32 v{64+r}, v12, v9")
    a("K1_p1:")
    a("s_mov_b64 exec, -1")
    a("s_waitcnt vmcnt(0)")
    for r in range(12):
        a(f"v_lshrrev_b32 v{16+r}, 9, v{16+r}")
        a(f"v_lshl_or_b32 v{32+r}, v{16+r}, 14, v{32+r}")
        a(f"v_add_u32 v12, {(r//4)*2048 + r%4}, v10")
        a(f"v_lshl_or_b32 v{32+r}, v12, 19, v{32+r}")
    a("s_waitcnt lgkmcnt(0)")
    for r in range(12):
        a(f"v_cmp_gt_u32 vcc, 32, v{64+r}")
        a(f"v_and_b32 v12, 7, v{64+r}")
        a(f"v_lshrrev_b32 v13, 3, v{64+r}")
        a(f"v_lshl_add_u32 v12, v12, 2, v13")
        a(f"v_lshl_add_u32 v12, v{48+r}, 5, v12")
        a(f"v_lshlrev_b32 v12, 2, v12")
        if r >= 8: a("s_and_b64 vcc, vcc, s[22:23]")
        a("s_mov_b64 exec, vcc")
        a(f"ds_write_b32 v12, v{32+r}")
        a("s_mov_b64 exec, -1")
    a("s_waitcnt lgkmcnt(0)")
    a("s_barrier")
    if dbg: a("s_memrealtime s[74:75]")
    a("v_lshrrev_b32 v12, 3, v0")
    a("v_lshl_add_u32 v13, v12, 2, s20")
    for i in range(8): a(f"ds_read_b32 v{64+i}, v13 offset:{i*256}")
    for i in range(8):
        if i == 7: a("s_waitcnt lgkmcnt(8)")
        a(f"ds_read_b128 {vr(16+4*i,4)}, v3 offset:{i*8192}")
    a("v_and_b32 v14, 7, v0")
    a("v_lshlrev_b32 v14, 4, v14")
    a("v_lshl_add_u32 v14, v12, 12, v14")
    a("s_lshl_b32 s17, s16, 7")
    a("v_add_u32 v14, s17, v14")
    for i in range(8):
        a(f"s_waitcnt lgkmcnt({7-i})" if not dbg else "s_waitcnt lgkmcnt(0)")
        a(f"v_cmp_ge_u32 vcc, 32, v{64+i}")
        a(f"s_mov_b32 s37, {i*64*4096}")
        a("s_nop 0")
        for k in range(4): a(f"v_cndmask_b32 v{16+4*i+k}, -2, v{16+4*i+k}, vcc")
        a(f"buffer_store_dwordx4 {vr(16+4*i,4)}, v14, s[32:35], s37 offen")
    a("s_branch K1_fin")
    a("K1_frag:")
    a("s_sub_u32 s16, s2, 224")
    a("v_lshlrev_b32 v3, 4, v0")
    a("s_lshl_b32 s17, s16, 14")
    a("s_add_u32 s17, s17, 0x20000")
    a("s_waitcnt lgkmcnt(0)")
    a("s_cmp_eq_u32 s16, 8")
    a("s_cselect_b32 s24, s4, s6")
    a("s_cselect_b32 s25, s5, s7")
    a(f"s_cselect_b32 s26, {528*512}, {512*512}") if False else None
    a(f"s_cselect_b32 s26, {16*512}, 0")
    a(f"s_add_u32 s26, s26, {512*512}")
    a("s_mov_b32 s27, 0x20000")
    srd(a, 32, 10, WS_WU2, 0x22000)
    a("s_lshl_b32 s18, s3, 10")
    a("s_mov_b32 m0, s18")
    a("s_add_u32 s19, s17, 0x2000")
    a("buffer_load_dwordx4 v3, s[24:27], s17 offen lds")
    a("s_add_u32 m0, s18, 0x2000")
    a("s_nop 0")
    a("buffer_load_dwordx4 v3, s[24:27], s19 offen lds")
    a("v_bfe_u32 v4, v2, 2, 2")
    a("v_and_b32 v5, 3, v2")
    a("v_lshrrev_b32 v6, 5, v2")
    a("v_bfe_u32 v7, v2, 4, 1")
    a("s_lshl_b32 s20, s3, 6")
    a("v_lshlrev_b32 v11, 4, v2")
    a("s_waitcnt vmcnt(0)")
    a("s_barrier")
    a("s_cmp_eq_u32 s16, 8")
    a("s_cbranch_scc1 K1_w3")
    a("v_lshl_add_u32 v8, v6, 4, v4")
    a("v_lshl_add_u32 v8, v7, 2, v8")
    a("v_lshlrev_b32 v8, 9, v8")
    a("v_lshl_add_u32 v8, v5, 4, v8")
    a("v_add_u32 v8, s20, v8")
    for u in range(2):
        for q in range(2):
            a(f"ds_read_b64_tr_b16 {vr(16+4*u+2*q,2)}, v8 offset:{q*4096+u*8}")
    a("s_lshl_b32 s21, s3, 14")
    a("s_lshl_b32 s22, s16, 11")
    a("s_add_u32 s21, s21, s22")
    a("s_waitcnt lgkmcnt(0)")
    a("buffer_store_dwordx4 v[16:19], v11, s[32:35], s21 offen")
    a("buffer_store_dwordx4 v[20:23], v11, s[32:35], s21 offen offset:1024")
    a("s_branch K1_fin")
    a("K1_w3:")
    a("v_lshl_add_u32 v8, v6, 3, v4")
    a("v_lshlrev_b32 v8, 9, v8")
    a("v_lshl_add_u32 v8, v7, 5, v8")
    a("v_lshl_add_u32 v8, v5, 3, v8")
    a("v_add_u32 v8, s20, v8")
    for q in range(2): a(f"ds_read_b64_tr_b16 {vr(16+2*q,2)}, v8 offset:{q*2048}")
    a(f"s_mov_b32 s22, {hex(LOG2E_NEG)}")
    a("s_add_u32 s21, s18, 0x20000")
    a("s_waitcnt lgkmcnt(0)")
    for i in range(4):
        a(f"v_lshlrev_b32 v20, 16, v{16+i}")
        a(f"v_and_b32 v21, 0xffff0000, v{16+i}")
        a("v_mul_f32 v20, s22, v20")
        a("v_mul_f32 v21, s22, v21")
        a(f"v_cvt_pk_bf16_f32 v{16+i}, v20, v21")
    a("buffer_store_dwordx4 v[16:19], v11, s[32:35], s21 offen")
    a("K1_fin:")
    if dbg:
        a("s_memrealtime s[76:77]")
        a("s_waitcnt vmcnt(0)")
        a("s_memrealtime s[78:79]")
        srd(a, 44, 10, WS_DBG, 0x100000)
        a("s_waitcnt lgkmcnt(0)")
        for i, s in enumerate((70, 72, 74, 76, 78)): a(f"v_mov_b32 v{16+i}, s{s}")
        a("s_lshl_b32 s16, s2, 3"); a("s_add_u32 s16, s16, s3"); a("s_lshl_b32 s16, s16, 5")
        a("v_mov_b32 v3, 0")
        a("buffer_store_dwordx4 v[16:19], v3, s[44:47], s16 offen")
        a("buffer_store_dword v20, v3, s[44:47], s16 offen offset:16")
    a("K1_end:")
    a("s_endpgm")
    return a.text(), desc("k1_kernel", 160)
```

```python
from common import *
NBLK = 13; CAP = NBLK * 32
STR = 65536
BS = 3072
MISC = STR + 2 * NBLK * BS
K2_LDS = MISC + 3 * BS
OOB = 0x7ff00000
aA, aS, aL, aP0, aP1, L4V = 1, 2, 3, 4, 5, 6
ACC, D, EE, MSG, PF, EA, OH, S, Q, W3, ID, WU = 16, 48, 80, 96, 104, 112, 116, 124, 132, 148, 156, 164
NV = 228
sW, sG, sWC, sRING, sC0, sC1 = 3, 16, 17, 18, 19, 20
sP, sWS, sEAT, sOUT, sQ, sSRC, sDST = 24, 28, 32, 36, 40, 44, 48
sNB, sB, sWIN, sNWIN, sM0, sM1, sSUB, sCH, sCNT = 52, 53, 54, 55, 56, 57, 58, 59, 60

def mf32(d, x, y, c): return f"v_mfma_f32_32x32x16_bf16 {vr(d,16)}, {vr(x,4)}, {vr(y,4)}, {c if isinstance(c,str) else vr(c,16)}"

def gen_k2(dbg=False):
    a = Asm()
    def st(n):
        if dbg:
            a(f"s_memrealtime s[{70+2*n}:{71+2*n}]")
            a("s_waitcnt lgkmcnt(0)")
    a("k2_kernel:")
    a("s_cmp_ge_u32 s2, 256")
    a("s_cbranch_scc1 K2_end")
    a("s_load_dwordx2 s[4:5], s[0:1], 64")
    a("s_load_dwordx2 s[6:7], s[0:1], 8")
    a("s_load_dwordx4 s[8:11], s[0:1], 16")
    a("s_load_dwordx2 s[12:13], s[0:1], 48")
    if dbg: a("s_memrealtime s[70:71]")
    a("v_lshrrev_b32 v8, 6, v0")
    a("v_and_b32 v9, 63, v0")
    a(f"v_readfirstlane_b32 s{sW}, v8")
    a("v_and_b32 v10, 0xff, v0")
    a("v_lshlrev_b32 v10, 4, v10")
    a(f"s_lshr_b32 s{sG}, s{sW}, 2")
    a(f"s_and_b32 s{sWC}, s{sW}, 3")
    a(f"s_lshl_b32 s{sRING}, s{sW}, 13")
    a(f"s_lshl_b32 s{sC0}, s{sWC}, 7")
    a(f"s_add_u32 s{sC1}, s{sC0}, 64")
    a(f"s_lshl_b32 s21, s{sG}, 8")
    a("s_add_u32 s21, s21, s2")
    a("s_lshl_b32 s22, s21, 12")
    a(f"s_add_u32 s22, s22, {WS_CELL}")
    a("v_lshrrev_b32 v11, 2, v9")
    a("v_lshlrev_b32 v11, 18, v11")
    a("v_and_b32 v12, 3, v9")
    a("v_lshl_add_u32 v11, v12, 4, v11")
    a("s_lshl_b32 s23, s21, 9")
    a("v_add_u32 v11, s23, v11")
    a(f"v_add_u32 v12, {16<<18}, v11")
    a("v_lshlrev_b32 v13, 4, v9")
    a("s_waitcnt lgkmcnt(0)")
    srd(a, sWS, 4, 0, WS_END)
    RC = D
    a(f"buffer_load_dwordx4 {vr(RC,4)}, v10, {sr(sWS,4)}, s22 offen")
    srd(a, sQ, 4, WS_Q, NBYTES)
    for t in range(2):
        for i in range(2):
            a(f"s_add_u32 m0, s{sRING}, {t*2048+i*1024}")
            a("s_nop 0")
            a(f"buffer_load_dwordx4 v{11+i}, {sr(sQ,4)}, s{sC0+t} offen lds")
    a(f"s_lshl_b32 s23, s{sWC}, 11")
    a(f"s_add_u32 s23, s23, {WS_W3}")
    for t in range(2): a(f"buffer_load_dwordx4 {vr(W3+4*t,4)}, v13, {sr(sWS,4)}, s23 offen offset:{t*1024}")
    a(f"s_lshl_b32 s14, s{sW}, 14")
    a(f"s_add_u32 s14, s14, {WS_WU2}")
    def wu(f0, f1):
        for f in range(f0, f1):
            if f % 4 == 0: a(f"s_add_u32 s23, s14, {f*1024}")
            a(f"buffer_load_dwordx4 {vr(WU+4*f,4)}, v13, {sr(sWS,4)}, s23 offen offset:{(f%4)*1024}")
    wu(0, 8)
    srd(a, sP, 4, WS_P, NBYTES)
    srd(a, sEAT, 6, 0, E * 32)
    srd(a, sOUT, 12, 0, NBYTES)
    srd(a, sSRC, 8, 0, E * 4)
    srd(a, sDST, 10, 0, E * 4)
    a("v_and_b32 v14, 31, v9")
    a("v_lshrrev_b32 v15, 5, v9")
    a("v_lshlrev_b32 v52, 3, v15")
    a("v_sub_u32 v52, v14, v52")
    a("v_and_b32 v53, 1, v52")
    a("v_lshlrev_b32 v53, 4, v53")
    a("v_mov_b32 v54, 0x3f80")
    a("v_lshlrev_b32 v53, v53, v54")
    a("v_ashrrev_i32 v52, 1, v52")
    for m in range(2):
        for dw in range(4):
            a(f"v_cmp_eq_u32 vcc, {8*m+dw}, v52")
            a("s_nop 1")
            a(f"v_cndmask_b32 v{ID+4*m+dw}, 0, v53, vcc")
    for i in range(32): a(f"v_mov_b32 v{ACC+i}, 0")
    a("v_bfe_u32 v52, v9, 2, 2")
    a("v_xor_b32 v52, v52, v15")
    a("v_lshlrev_b32 v52, 4, v52")
    a("v_lshl_add_u32 v52, v14, 6, v52")
    a(f"v_add_u32 v{aP0}, s{sRING}, v52")
    a(f"v_xor_b32 v{aP1}, 32, v{aP0}")
    a(f"s_mul_i32 s15, s{sG}, {NBLK*BS}")
    a(f"s_add_u32 s15, s15, {STR}")
    a(f"s_mov_b32 s{sWIN}, 0")
    a(f"s_mov_b32 s{sSUB}, -1")
    a(f"s_mov_b32 s61, 1")
    a("K2_round:")
    a("v_mov_b32 v56, 0"); a("v_mov_b32 v57, 0"); a("v_mov_b32 v58, 0"); a("v_mov_b32 v59, 0")
    a(f"s_mul_i32 s23, s{sW}, {BS}")
    a(f"s_add_u32 s23, s23, {STR}")
    a("v_add_u32 v52, s23, v13")
    a("v_lshl_add_u32 v53, v9, 3, s23")
    for i in range(3):
        a(f"ds_write_b128 v52, v[56:59] offset:{i*8*BS}")
        a(f"ds_write_b64 v53, v[56:57] offset:{i*8*BS+1024}")
    a(f"s_cmp_ge_u32 s{sW}, 2")
    a("s_cbranch_scc1 K2_z1")
    a(f"v_add_u32 v52, {24*BS}, v52")
    a(f"v_add_u32 v53, {24*BS}, v53")
    a("ds_write_b128 v52, v[56:59]")
    a("ds_write_b64 v53, v[56:57] offset:1024")
    a("K2_z1:")
    a(f"v_add_u32 v{aA}, s15, v13")
    a(f"v_lshl_add_u32 v{aL}, v9, 2, s15")
    a("v_bfe_u32 v52, v9, 4, 1")
    a("v_bfe_u32 v53, v9, 1, 1")
    a("v_lshl_add_u32 v52, v52, 1, v53")
    a("v_lshlrev_b32 v52, 9, v52")
    a("v_bfe_u32 v53, v9, 2, 2")
    a("v_lshl_add_u32 v53, v15, 2, v53")
    a("v_lshl_add_u32 v52, v53, 4, v52")
    a("v_and_b32 v53, 1, v9")
    a("v_lshl_add_u32 v52, v53, 3, v52")
    a(f"v_add_u32 v{aS}, s15, v52")
    for i in range(8): a(f"v_mov_b32 v{MSG+i}, 0")
    for i in range(8): a(f"v_mov_b32 v{S+i}, 0")
    a("s_cmp_eq_u32 s61, 0")
    a("s_cbranch_scc1 K2_slowload")
    a("v_bfe_u32 v55, v0, 3, 5")
    a(f"v_mul_u32_u24 v55, {CHE*32}, v55")
    a("s_waitcnt vmcnt(14)")
    a("K2_havrec:")
    st(1)
    for k in range(4): a(f"v_cmp_gt_u32 s[{62+2*k}:{63+2*k}], -2, v{RC+k}")
    a(f"v_cmp_eq_u32 vcc, -2, v{RC}")
    a("s_nop 0")
    for k in range(4):
        a(f"v_mbcnt_lo_u32_b32 v{60+k}, s{62+2*k}, 0")
        a(f"v_mbcnt_hi_u32_b32 v{60+k}, s{63+2*k}, v{60+k}")
    a("s_bcnt1_i32_b64 s86, s[62:63]")
    a("s_bcnt1_i32_b64 s87, s[64:65]")
    a("s_bcnt1_i32_b64 s88, s[66:67]")
    a("s_bcnt1_i32_b64 s89, s[68:69]")
    a("s_add_u32 s87, s87, s86")
    a("s_add_u32 s88, s88, s87")
    a("s_add_u32 s89, s89, s88")
    a("v_mov_b32 v64, s89")
    a("v_mov_b32 v65, vcc_lo")
    a("v_mov_b32 v66, vcc_hi")
    a(f"s_lshl_b32 s23, s{sW}, 4")
    a(f"s_add_u32 s23, s23, {MISC}")
    a("v_mov_b32 v68, s23")
    a("ds_write_b96 v68, v[64:66]")
    a("v_and_b32 v68, 7, v9")
    a("v_lshlrev_b32 v68, 4, v68")
    a(f"v_add_u32 v68, {MISC}, v68")
    a("s_waitcnt lgkmcnt(0)")
    a("s_barrier")
    a("ds_read_b96 v[64:66], v68")
    a("s_cmp_eq_u32 s61, 0")
    a("s_cbranch_scc1 K2_noq")
    a("v_bfe_u32 v52, v9, 2, 2")
    a("v_lshl_add_u32 v52, v15, 3, v52")
    a("v_lshlrev_b32 v52, 6, v52")
    a("v_bfe_u32 v53, v9, 4, 1")
    a("v_lshl_add_u32 v52, v53, 5, v52")
    a("v_and_b32 v53, 3, v9")
    a("v_lshl_add_u32 v52, v53, 3, v52")
    a(f"v_add_u32 v52, s{sRING}, v52")
    a("s_waitcnt vmcnt(10)")
    for t in range(2):
        for m in range(2):
            for q in range(2):
                a(f"ds_read_b64_tr_b16 {vr(Q+8*t+4*m+2*q,2)}, v52 offset:{t*2048+m*1024+q*256}")
    a("K2_noq:")
    a("s_waitcnt lgkmcnt(0)")
    for w in range(8): a(f"v_readlane_b32 s{90+w}, v64, {w}")
    a("v_or_b32 v65, v65, v66")
    a("v_cmp_ne_u32 vcc, 0, v65")
    a("s_add_u32 s91, s91, s90"); a("s_add_u32 s92, s92, s91"); a("s_add_u32 s93, s93, s92")
    a("s_add_u32 s95, s95, s94"); a("s_add_u32 s96, s96, s95"); a("s_add_u32 s97, s97, s96")
    a("s_max_u32 s98, s93, s97")
    a(f"s_cmp_eq_u32 s{sG}, 0")
    a("s_cselect_b32 s90, s90, s94"); a("s_cselect_b32 s91, s91, s95"); a("s_cselect_b32 s92, s92, s96"); a("s_cselect_b32 s93, s93, s97")
    a(f"s_cmp_eq_u32 s{sWC}, 1"); a("s_cselect_b32 s94, s90, 0")
    a(f"s_cmp_eq_u32 s{sWC}, 2"); a("s_cselect_b32 s94, s91, s94")
    a(f"s_cmp_eq_u32 s{sWC}, 3"); a("s_cselect_b32 s94, s92, s94")
    a(f"s_sub_u32 s94, s94, s{sWIN}")
    a(f"s_sub_i32 s{sCNT}, s93, s{sWIN}")
    a(f"s_max_i32 s{sCNT}, s{sCNT}, 0")
    a(f"s_min_i32 s{sCNT}, s{sCNT}, {CAP}")
    a(f"s_add_u32 s{sNB}, s{sCNT}, 31")
    a(f"s_lshr_b32 s{sNB}, s{sNB}, 5")
    a(f"s_mov_b32 s{sNWIN}, s98")
    a("s_cmp_eq_u32 s61, 0")
    a("s_cbranch_scc1 K2_nomark")
    a(f"s_mov_b32 s{sM0}, 0"); a(f"s_mov_b32 s{sM1}, 0")
    a("s_cbranch_vccz K2_nomark")
    a("v_lshrrev_b32 v52, 3, v9")
    a("v_lshlrev_b32 v52, 4, v52")
    a("v_and_b32 v53, 7, v9")
    a("v_add_u32 v52, v52, v53")
    a(f"v_add_u32 v52, {MISC+4}, v52")
    a("ds_read_u8 v52, v52")
    a("s_waitcnt lgkmcnt(0)")
    a(f"v_cmp_ne_u32 s[{sM0}:{sM1}], 0, v52")
    a("K2_nomark:")
    a("s_mov_b32 s95, s94")
    a("s_add_u32 s96, s94, s86"); a("s_add_u32 s97, s94, s87"); a("s_add_u32 s98, s94, s88")
    a(f"s_movk_i32 s99, {CAP}")
    a("v_mov_b32 v54, 0x3f80")
    for k in range(4):
        a(f"v_add_u32 v{60+k}, s{95+k}, v{60+k}")
        a(f"v_cmp_gt_u32 vcc, s99, v{60+k}")
        a(f"s_and_b64 exec, vcc, s[{62+2*k}:{63+2*k}]")
        a(f"s_cbranch_execz K2_x{k}")
        a(f"v_lshrrev_b32 v64, 5, v{60+k}")
        a(f"v_mul_u32_u24 v64, {BS}, v64")
        a(f"v_and_b32 v65, 31, v{60+k}")
        a(f"v_add_u32 v64, s15, v64")
        a(f"v_lshl_add_u32 v66, v65, 4, v64")
        a(f"v_lshl_add_u32 v67, v65, 2, v64")
        a(f"v_bfe_u32 v68, v{RC+k}, 17, 2")
        a(f"v_lshl_add_u32 v68, v68, 9, v66")
        a(f"v_bfe_u32 v69, v{RC+k}, 14, 3")
        a(f"v_lshl_add_u32 v68, v69, 1, v68")
        a(f"ds_write_b16 v68, v54")
        a(f"v_lshrrev_b32 v69, 19, v{RC+k}")
        a(f"v_lshl_add_u32 v69, v69, 5, v55")
        a(f"ds_write_b32 v67, v69 offset:1536")
        a(f"v_and_b32 v72, 0x3fff, v{RC+k}")
        a(f"v_bfe_u32 v65, v65, 2, 2")
        a(f"v_lshlrev_b32 v65, 4, v65")
        a(f"v_lshl_add_u32 v72, v72, 9, v65")
        a(f"v_xor_b32 v73, 16, v72")
        a(f"v_xor_b32 v74, 32, v72")
        a(f"v_xor_b32 v75, 48, v72")
        a(f"ds_write_b128 v66, v[72:75] offset:2560")
        a(f"K2_x{k}:")
        a("s_mov_b64 exec, -1")
    a(f"s_cmp_lg_u32 s{sWC}, 3")
    a("s_cbranch_scc1 K2_nopad")
    a(f"s_and_b32 s23, s{sCNT}, 31")
    a("s_cbranch_scc0 K2_nopad")
    a(f"s_lshr_b32 s94, s{sCNT}, 5")
    a(f"s_mul_i32 s94, s94, {BS}")
    a("s_add_u32 s94, s94, s15")
    a("v_lshl_add_u32 v66, v14, 4, s94")
    a("v_lshl_add_u32 v67, v14, 2, s94")
    for i in range(4): a(f"v_mov_b32 v{72+i}, {hex(OOB)}")
    a("v_cmp_le_u32 vcc, s23, v14")
    a("s_mov_b64 exec, vcc")
    a("ds_write_b32 v67, v72 offset:1536")
    a("ds_write_b128 v66, v[72:75] offset:2560")
    a("s_mov_b64 exec, -1")
    a("K2_nopad:")
    a(f"s_mul_i32 s23, s{sWC}, {BS}")
    a("s_add_u32 s23, s23, s15")
    a("v_lshl_add_u32 v67, v14, 2, s23")
    a("v_lshlrev_b32 v68, 4, v15")
    a("s_waitcnt lgkmcnt(0)")
    a("s_barrier")
    st(2)
    a(f"ds_read2st64_b32 {vr(L4V,2)}, v{aL} offset0:10 offset1:11")
    for i in range(4): a(f"ds_read_b32 v{60+i}, v67 offset:{1536+i*4*BS}")
    a(f"ds_read2st64_b32 v[64:65], v{aL} offset0:22 offset1:23")
    def pdma(slot, lv):
        L = []
        for t in range(2):
            for i in range(2):
                L.append(f"s_add_u32 m0, s{sRING}, {slot*4096+t*2048+i*1024}\ns_nop 0\nbuffer_load_dwordx4 v{lv+i}, {sr(sP,4)}, s{sC0+t} offen lds")
        return L
    a(f"s_cmp_gt_u32 s{sNB}, 0")
    a(f"s_cselect_b32 s{sP+2}, {NBYTES}, 0")
    a("s_waitcnt lgkmcnt(5)")
    for x in pdma(0, L4V): a(x)
    a("s_waitcnt lgkmcnt(0)")
    for i in range(4):
        a(f"s_add_u32 s94, s{sWC}, {4*i}")
        a(f"s_cmp_ge_u32 s94, s{sNB}")
        a(f"s_cbranch_scc1 K2_noea")
        a(f"v_add_u32 v{60+i}, v68, v{60+i}")
        a(f"s_add_u32 m0, s23, {1536+i*4*BS}")
        a("s_nop 0")
        a(f"buffer_load_dwordx4 v{60+i}, {sr(sEAT,4)}, 0 offen lds")
    a("K2_noea:")
    a(f"s_cmp_gt_u32 s{sNB}, 1")
    a(f"s_cselect_b32 s{sP+2}, {NBYTES}, 0")
    for x in pdma(1, 64): a(x)
    a("s_cmp_eq_u32 s61, 0")
    a("s_cbranch_scc1 K2_nowu")
    wu(8, 16)
    a("s_waitcnt vmcnt(12)")
    a("s_branch K2_go")
    a("K2_nowu:")
    a("s_waitcnt vmcnt(4)")
    a("K2_go:")
    a("s_barrier")
    st(3)
    a(f"s_cmp_eq_u32 s{sNB}, 0")
    a("s_cbranch_scc1 K2_rend")
    def rdA(off):
        return [f"ds_read_b128 {vr(EA,4)}, v{aA} offset:{off+1536}",
                f"ds_read_b128 {vr(OH,4)}, v{aA} offset:{off}",
                f"ds_read_b128 {vr(OH+4,4)}, v{aA} offset:{off+1024}"]
    def rdP(slot, t):
        return [f"ds_read_b128 {vr(PF,4)}, v{aP0} offset:{slot*4096+t*2048}",
                f"ds_read_b128 {vr(PF+4,4)}, v{aP1} offset:{slot*4096+t*2048}"]
    def rdS(off):
        return [f"ds_read_b64_tr_b16 {vr(S+4*m+2*q,2)}, v{aS} offset:{off+m*256+q*128}" for m in range(2) for q in range(2)]
    def M1(t):
        d = D + 16 * t
        return [mf32(d, EA, W3+4*t, "0"), mf32(d, OH, Q+8*t, d), mf32(d, OH+4, Q+8*t+4, d), mf32(d, PF, ID, d), mf32(d, PF+4, ID+4, d)]
    def M2(t):
        return [mf32(ACC+16*t, MSG, S, ACC+16*t), mf32(ACC+16*t, MSG+4, S+4, ACC+16*t)]
    for x in rdA(0) + rdP(0, 0): a(x)
    a(f"s_mov_b32 s{sB}, 0")
    a("s_waitcnt lgkmcnt(0)")
    for x in M1(0): a(x)
    a("s_nop 7"); a("s_nop 3")
    def V(t, ins):
        d = D + 16 * t
        ops = [f"v_exp_f32 v{EE+i}, v{d+i}" for i in range(16)]
        ops += [f"v_pk_add_f32 {vr(EE+i,2)}, {vr(EE+i,2)}, 1.0 op_sel_hi:[1,0]" for i in range(0, 16, 2)]
        ops += [f"v_rcp_f32 v{EE+i}, v{EE+i}" for i in range(16)]
        ops += [f"v_pk_mul_f32 {vr(EE+i,2)}, {vr(EE+i,2)}, {vr(d+i,2)}" for i in range(0, 16, 2)]
        ops += [f"v_cvt_pk_bf16_f32 v{MSG+i}, v{EE+2*i}, v{EE+2*i+1}" for i in range(8)]
        for i, o in enumerate(ops):
            for x in ins.get(i, []): a(x)
            a(o)
    def add(ins, i, x): ins.setdefault(i, []).append(x)
    def block(par):
        off = par * BS
        ins = {}
        m1, m2 = M1(1), M2(1)
        p = rdP(par, 1); s_ = rdS(off); A = rdA(off + BS); dm = pdma(par, L4V)
        add(ins, 0, m2[0]); add(ins, 1, p[0]); add(ins, 2, p[1]); add(ins, 3, m2[1])
        add(ins, 4, f"ds_read2st64_b32 {vr(L4V,2)}, v{aL} offset0:{(off+2*BS+2560)//256} offset1:{(off+2*BS+2560)//256+1}")
        add(ins, 5, s_[0]); add(ins, 6, m1[0]); add(ins, 7, s_[1]); add(ins, 8, s_[2]); add(ins, 9, m1[1]); add(ins, 10, s_[3])
        add(ins, 12, f"s_add_u32 s94, s{sB}, 2\ns_cmp_lt_u32 s94, s{sNB}\ns_cselect_b32 s{sP+2}, {NBYTES}, 0")
        add(ins, 24, m1[2]); add(ins, 25, "s_waitcnt lgkmcnt(0)"); add(ins, 25, A[0]); add(ins, 26, A[1]); add(ins, 27, m1[3]); add(ins, 28, A[2])
        add(ins, 30, m1[4])
        for i in range(4): add(ins, 31 + 2*i, dm[i])
        V(0, ins)
        ins = {}
        m1, m2 = M1(0), M2(0)
        p = rdP(1 - par, 0)
        add(ins, 0, m2[0]); add(ins, 1, "s_waitcnt vmcnt(4)"); add(ins, 1, p[0]); add(ins, 2, p[1]); add(ins, 3, m2[1])
        add(ins, 6, "s_waitcnt lgkmcnt(2)"); add(ins, 6, m1[0]); add(ins, 9, m1[1])
        add(ins, 24, m1[2]); add(ins, 27, "s_waitcnt lgkmcnt(0)"); add(ins, 27, m1[3]); add(ins, 30, m1[4])
        if par == 1:
            add(ins, 48, f"v_add_u32 v{aA}, {2*BS}, v{aA}\nv_add_u32 v{aS}, {2*BS}, v{aS}\nv_add_u32 v{aL}, {2*BS}, v{aL}")
        add(ins, 50, f"s_add_u32 s{sB}, s{sB}, 1\ns_cmp_ge_u32 s{sB}, s{sNB}")
        V(1, ins)
    a("K2_loop:")
    block(0)
    a("s_cbranch_scc1 K2_lend")
    block(1)
    a("s_cbranch_scc0 K2_loop")
    a("K2_lend:")
    a("s_nop 1")
    for x in M2(1): a(x)
    a("K2_rend:")
    st(4)
    a("s_mov_b32 s61, 0")
    a(f"s_add_u32 s{sWIN}, s{sWIN}, {CAP}")
    a(f"s_cmp_lt_u32 s{sWIN}, s{sNWIN}")
    a("s_cbranch_scc1 K2_again")
    a(f"s_or_b32 s23, s{sM0}, s{sM1}")
    a("s_cbranch_scc0 K2_final")
    a(f"s_mov_b32 s{sWIN}, 0")
    a(f"s_add_u32 s{sSUB}, s{sSUB}, 1")
    a(f"s_cmp_lt_u32 s{sSUB}, 5")
    a("s_cbranch_scc1 K2_samech")
    a(f"s_bitset0_b32 s{sM0}, s{sCH}")
    a(f"s_bitset0_b32 s{sM1}, s{sCH}")
    a(f"s_mov_b32 s{sSUB}, 0")
    a(f"s_or_b32 s23, s{sM0}, s{sM1}")
    a("s_cbranch_scc0 K2_final")
    a("K2_samech:")
    a(f"s_ff1_i32_b32 s{sCH}, s23")
    a("K2_again:")
    a("s_nop 7"); a("s_nop 7")
    a("s_waitcnt vmcnt(0) lgkmcnt(0)")
    a("s_barrier")
    a("s_branch K2_round")
    a("K2_slowload:")
    a(f"s_cmp_lg_u32 s{sSUB}, -1")
    a("s_cbranch_scc1 K2_raw")
    a(f"buffer_load_dwordx4 {vr(RC,4)}, v10, {sr(sWS,4)}, s22 offen")
    a("v_bfe_u32 v55, v0, 3, 5")
    a(f"v_mul_u32_u24 v55, {CHE*32}, v55")
    a("s_waitcnt vmcnt(0)")
    a("s_branch K2_havrec")
    a("K2_raw:")
    a(f"s_mul_i32 s23, s{sCH}, {CHE*4}")
    a(f"s_lshl_b32 s94, s{sSUB}, 12")
    a("s_add_u32 s23, s23, s94")
    a(f"buffer_load_dwordx4 {vr(RC,4)}, v10, {sr(sSRC,4)}, s23 offen")
    a(f"buffer_load_dwordx4 v[64:67], v10, {sr(sDST,4)}, s23 offen")
    a(f"s_mul_i32 s95, s{sCH}, {CHE*32}")
    a("v_mov_b32 v55, s95")
    a(f"s_cmp_eq_u32 s{sG}, 0")
    a(f"s_cselect_b32 s95, s{sM0}, s{sM1}")
    a(f"s_bitcmp1_b32 s95, s{sCH}")
    a("s_cselect_b32 s95, s21, -1")
    a("v_add_u32 v68, s94, v10")
    a("v_lshrrev_b32 v68, 2, v68")
    a(f"s_movk_i32 s96, {CHE}")
    a("v_cmp_gt_u32 s[62:63], s96, v68")
    a("s_waitcnt vmcnt(0)")
    for k in range(4):
        a(f"v_and_b32 v69, 0x1ff, v{64+k}")
        a("v_cmp_eq_u32 vcc, s95, v69")
        a(f"v_lshrrev_b32 v69, 9, v{64+k}")
        a(f"v_lshl_or_b32 v{RC+k}, v69, 14, v{RC+k}")
        a(f"v_add_u32 v69, {k}, v68")
        a(f"v_lshl_or_b32 v{RC+k}, v69, 19, v{RC+k}")
        a("s_and_b64 vcc, vcc, s[62:63]")
        a(f"v_cndmask_b32 v{RC+k}, -1, v{RC+k}, vcc")
    a("s_branch K2_havrec")
    a("K2_final:")
    UU = EE
    def nodeoff(dst, n):
        a(f"v_cmp_le_u32 vcc, 20, v{n}")
        a(f"v_lshlrev_b32 v{dst}, 18, v{n}")
        a(f"v_subrev_u32 v{n}, {hex((20<<18) - (256<<9))}, v{dst}")
        a(f"v_cndmask_b32 v{dst}, v{dst}, v{n}, vcc")
    a("s_lshl_b32 s23, s2, 9")
    a(f"s_lshl_b32 s94, s{sW}, 6")
    a("s_add_u32 s23, s23, s94")
    srd(a, sQ, 4, WS_U, NBYTES)
    a("v_and_b32 v1, 15, v9")
    a("v_lshrrev_b32 v2, 4, v9")
    a("v_lshrrev_b32 v3, 2, v9")
    a("v_and_b32 v4, 3, v9")
    for nt in range(3):
        a(f"v_add_u32 v6, {16*nt}, v1")
        nodeoff(5, 6)
        a(f"v_lshrrev_b32 v{108+nt}, 17, v5")
        a("v_lshl_add_u32 v5, v2, 4, v5")
        a(f"buffer_load_dwordx4 {vr(UU+4*nt,4)}, v5, {sr(sQ,4)}, s23 offen")
        a(f"v_add_u32 v6, {16*nt}, v3")
        nodeoff(104+nt, 6)
        a(f"v_lshl_add_u32 v{104+nt}, v4, 4, v{104+nt}")
    a("v_and_b32 v5, 7, v14")
    a("v_xor_b32 v5, v5, v15")
    a("v_lshlrev_b32 v5, 4, v5")
    a("v_lshl_add_u32 v5, v14, 7, v5")
    a(f"v_add_u32 v5, s{sRING}, v5")
    a(f"s_mov_b32 s94, {hex(LN2_NEG)}"); a("s_mov_b32 s95, s94")
    for i in range(0, 32, 2): a(f"v_pk_mul_f32 {vr(ACC+i,2)}, {vr(ACC+i,2)}, s[94:95]")
    for i in range(16): a(f"v_cvt_pk_bf16_f32 v{D+i}, v{ACC+2*i}, v{ACC+2*i+1}")
    a("s_waitcnt vmcnt(3)")
    for tm in range(4):
        a(f"v_xor_b32 v6, {tm*32}, v5")
        a(f"ds_write_b128 v6, {vr(D+4*tm,4)}")
    for nt in range(3):
        a(f"v_and_b32 v5, 1, v{108+nt}")
        a(f"v_lshrrev_b32 v6, 1, v{108+nt}")
        a("v_and_b32 v7, 7, v6")
        a("v_xor_b32 v7, v7, v2")
        a("v_lshlrev_b32 v7, 4, v7")
        a("v_lshl_add_u32 v7, v6, 7, v7")
        a(f"v_lshl_add_u32 v{108+nt}, v5, 15, v7")
        a(f"v_xor_b32 v{112+nt}, 64, v{108+nt}")
    a("s_waitcnt lgkmcnt(0)")
    a("s_barrier")
    st(5)
    O = ACC
    AF = [D, D + 32 - 0, 116]
    def rdF(nt, buf):
        for T in range(8):
            if nt > 0 and T == 7: a("s_waitcnt lgkmcnt(14)")
            a(f"ds_read_b128 {vr(buf+4*T,4)}, v{(108 if T%2==0 else 112)+nt} offset:{(T>>1)*8192}")
    def mmF(nt, buf, waits):
        for T in range(8):
            if waits is not None: a(f"s_waitcnt lgkmcnt({waits+7-T})")
            for u in range(2):
                o = O + 8*nt + 4*u
                a(f"v_mfma_f32_16x16x32_bf16 {vr(o,4)}, {vr(WU+8*T+4*u,4)}, {vr(buf+4*T,4)}, {'0' if T==0 else vr(o,4)}")
    rdF(0, D); rdF(1, 116)
    mmF(0, D, 8)
    rdF(2, D)
    mmF(1, 116, 8)
    mmF(2, D, 0)
    a(f"s_mov_b32 s94, {hex(LOG2E_NEG)}"); a("s_mov_b32 s95, s94")
    a("v_lshlrev_b32 v5, 6, v1")
    a("v_lshl_add_u32 v5, v2, 4, v5")
    a(f"v_add_u32 v5, s{sRING}, v5")
    a(f"v_add_u32 v6, s{sRING}, v13")
    a("s_waitcnt vmcnt(0)")
    st(6)
    for nt in range(3):
        o = O + 8*nt; T0 = 116
        for i in range(4):
            a(f"v_lshlrev_b32 v{T0+2*i}, 16, v{UU+4*nt+i}")
            a(f"v_and_b32 v{T0+2*i+1}, 0xffff0000, v{UU+4*nt+i}")
        for i in range(0, 8, 2): a(f"v_pk_add_f32 {vr(o+i,2)}, {vr(o+i,2)}, {vr(T0+i,2)}")
        for i in range(0, 8, 2): a(f"v_pk_mul_f32 {vr(T0+i,2)}, {vr(o+i,2)}, s[94:95]")
        for i in range(8): a(f"v_exp_f32 v{T0+i}, v{T0+i}")
        for i in range(0, 8, 2): a(f"v_pk_add_f32 {vr(T0+i,2)}, {vr(T0+i,2)}, 1.0 op_sel_hi:[1,0]")
        for i in range(8): a(f"v_rcp_f32 v{T0+i}, v{T0+i}")
        for i in range(0, 8, 2): a(f"v_pk_mul_f32 {vr(o+i,2)}, {vr(o+i,2)}, {vr(T0+i,2)}")
        for i in range(4): a(f"v_cvt_pk_bf16_f32 v{128+4*nt+i}, v{o+2*i}, v{o+2*i+1}")
        a(f"ds_write_b128 v5, {vr(128+4*nt,4)} offset:{4096+nt*1024}")
        a(f"ds_read_b128 {vr(D+4*nt,4)}, v6 offset:{4096+nt*1024}")
        if nt > 0:
            a("s_waitcnt lgkmcnt(2)")
            a(f"buffer_store_dwordx4 {vr(D+4*(nt-1),4)}, v{104+nt-1}, {sr(sOUT,4)}, s23 offen")
    a("s_waitcnt lgkmcnt(0)")
    a(f"buffer_store_dwordx4 {vr(D+8,4)}, v106, {sr(sOUT,4)}, s23 offen")
    if dbg:
        a("s_waitcnt vmcnt(0)")
        st(7)
        for i in range(8): a(f"v_mov_b32 v{16+i}, s{70+2*i}")
        a("s_lshl_b32 s16, s2, 3"); a(f"s_add_u32 s16, s16, s{sW}"); a("s_lshl_b32 s16, s16, 5"); a(f"s_add_u32 s16, s16, {WS_DBG+0x20000}")
        a("v_mov_b32 v3, 0")
        a(f"buffer_store_dwordx4 v[16:19], v3, {sr(sWS,4)}, s16 offen")
        a(f"buffer_store_dwordx4 v[20:23], v3, {sr(sWS,4)}, s16 offen offset:16")
    a("K2_end:")
    a("s_endpgm")
    return a.text(), desc("k2_kernel", NV)
```

```python
import sys
from common import *
import k1, k2
dbg = "--dbg" in sys.argv
out = [x for x in sys.argv[1:] if not x.startswith("--")][0]
hdr = open("standalone__mpnn_edge_mlp__graph.s.ref").read().split("; Override launch")[0]
t1, d1 = k1.gen_k1(dbg); t2, d2 = k2.gen_k2(dbg)
s = hdr
s += f"; @launch kernel=k1_kernel grid=({k1.K1_GRID},1,1) block=(512,1,1) lds={k1.K1_LDS}\n"
s += f"; @launch kernel=k2_kernel grid=(256,1,1) block=(512,1,1) lds={k2.K2_LDS}\n"
s += '.amdgcn_target "amdgcn-amd-amdhsa--gfx950"\n.text\n'
for n, t in (("k1_kernel", t1), ("k2_kernel", t2)):
    s += f".globl {n}\n.p2align 8\n.type {n},@function\n" + t
s += '.section .rodata,"a"\n.p2align 6\n' + d1 + ".p2align 6\n" + d2
open(out, "w").write(s)
```

```python
class Asm:
    def __init__(self):
        self.L = []
    def __call__(self, s):
        for line in s.strip("\n").split("\n"):
            line = line.strip()
            if not line: continue
            if line.endswith(":"): self.L.append(line)
            else: self.L.append("    " + line)
    def text(self): return "\n".join(self.L) + "\n"

def vr(b, n): return f"v[{b}:{b+n-1}]"
def sr(b, n): return f"s[{b}:{b+n-1}]"

N = 10000; E = 160000
ROWB = 512
NBYTES = N * ROWB
WS_P = 0x1000
WS_CELL = 0x500000
WS_WU1 = 0x760000
WS_WU2 = 0x720000
WS_FLAG = 0x780000
WS_W3 = 0x740000
WS_DBG = 0x1200000
WS_END = 0x1300000
NCH = 32; CHE = 5000
LOG2E_NEG = 0xBFB8AA3B
LN2_NEG = 0xBF317218

def srd(a, d, base, off, nrec):
    if off:
        a(f"s_add_u32 s{d}, s{base}, {hex(off)}")
        a(f"s_addc_u32 s{d+1}, s{base+1}, 0")
    else:
        a(f"s_mov_b32 s{d}, s{base}")
        a(f"s_mov_b32 s{d+1}, s{base+1}")
    a(f"s_mov_b32 s{d+2}, {hex(nrec)}")
    a(f"s_mov_b32 s{d+3}, 0x20000")

def desc(name, nv, ns=102):
    acc = (nv + 3) // 4 * 4
    return f""".amdhsa_kernel {name}
  .amdhsa_next_free_vgpr {nv}
  .amdhsa_next_free_sgpr {ns}
  .amdhsa_accum_offset {acc}
  .amdhsa_group_segment_fixed_size 0
  .amdhsa_kernarg_size 72
  .amdhsa_user_sgpr_count 2
  .amdhsa_user_sgpr_kernarg_segment_ptr 1
  .amdhsa_system_sgpr_workgroup_id_x 1
.end_amdhsa_kernel
"""

def stamp(a, idx, kern, dbg, sws, st, vt):
    if not dbg: return
    a(f"s_memtime s[{st}:{st+1}]")
    a(f"s_waitcnt lgkmcnt(0)")
    a(f"s_mov_b32 s{dbg + idx}, s{st}")
```

```python
from common import *
from loop import *
NBLK = 13; CAP = NBLK * 32
STR = 8 * RINGW
XO = STR + 2 * NBLK * BS
MISC = XO + 40 * 512
LDS = 163840
XP = STR; PST = STR + 48 * 512
UA = 228; NV = 252
NPW = 209; PART0 = 209; FRAG0 = 241; NPROD_A = 41
sW, sG, sWC, sRING, sGB, sCELL, sT = 3, 16, 17, 18, 19, 14, 61
sC0 = 20
sP, sWS, sEAT, sOUT, sX, sSRC, sDST = 24, 28, 32, 36, 40, 44, 48
sNB, sB, sWIN, sNWIN, sM0, sM1, sSUB, sCH, sCNT = 52, 53, 54, 55, 56, 57, 58, 59, 60
sWM, sDBG, sWUP = 64, 88, 92
sSB = 15
vLANE, vT16, vL16, vJ, vH = 9, 7, 13, 14, 15
SPIN = 400000

def mf16(d, x, y, c): return f"v_mfma_f32_16x16x32_bf16 {vr(d,4)}, {vr(x,4)}, {vr(y,4)}, {c if isinstance(c,str) else vr(c,4)}"

def gen_front(a, st, dbg):
    a("s_cmp_ge_u32 s2, 256")
    a("s_cbranch_scc1 K_end")
    a("s_load_dwordx8 s[72:79], s[0:1], 0")
    a("s_load_dwordx8 s[80:87], s[0:1], 32")
    a("s_load_dwordx2 s[4:5], s[0:1], 64")
    if dbg: a("s_memrealtime s[70:71]\ns_memtime s[100:101]")
    a("v_lshrrev_b32 v16, 6, v0")
    a(f"v_and_b32 v{vLANE}, 63, v0")
    a(f"v_readfirstlane_b32 s{sW}, v16")
    a(f"v_and_b32 v{vT16}, 0xff, v0")
    a(f"v_lshlrev_b32 v{vT16}, 4, v{vT16}")
    a(f"v_lshlrev_b32 v{vL16}, 4, v{vLANE}")
    a(f"v_and_b32 v{vJ}, 31, v{vLANE}")
    a(f"v_lshrrev_b32 v{vH}, 5, v{vLANE}")
    a(f"s_lshr_b32 s{sG}, s{sW}, 2")
    a(f"s_and_b32 s{sWC}, s{sW}, 3")
    a(f"s_mul_i32 s{sRING}, s{sW}, {RINGW}")
    a(f"v_lshrrev_b32 v20, 2, v{vLANE}")
    a(f"v_and_b32 v21, 3, v{vLANE}")
    a("v_lshlrev_b32 v21, 4, v21")
    a("v_lshl_add_u32 v22, v20, 9, v21")
    a(f"s_lshl_b32 s6, s{sW}, 6")
    a("v_add_u32 v17, s6, v22")
    a(f"v_add_u32 v18, {8192-1024}, v17")
    a(f"s_lshl_b32 s7, s{sW}, 1")
    a(f"v_add_u32 v23, s7, v{vH}")
    a(f"v_xor_b32 v24, v23, v{vJ}")
    a("v_lshlrev_b32 v24, 4, v24")
    a("v_lshl_add_u32 v25, v23, 9, v24")
    a("v_lshl_add_u32 v26, v23, 18, v24")
    a(f"v_add_u32 v27, {hex(16<<18)}, v26")
    a(f"v_subrev_u32 v28, {hex((4<<18) - (256<<9))}, v26")
    a("v_cmp_le_u32 vcc, 4, v23")
    a(f"v_add_u32 v29, {hex((12<<18) + (256<<9))}, v26")
    a(f"s_lshl_b32 s8, s{sW}, 10")
    a("v_cndmask_b32 v27, v27, v28, vcc")
    a("s_lshl_b32 s9, s2, 9")
    a("v_mov_b32 v30, 0")
    a("v_mov_b32 v31, 1")
    a("v_mov_b32 v43, 0")
    a("s_mov_b32 s12, 0")
    a("s_lshl_b32 s10, s2, 7")
    a(f"s_add_u32 s10, s10, {WS_FLAG}")
    a("s_waitcnt lgkmcnt(0)")
    srd(a, sX, 72, 0, NBYTES)
    srd(a, sWM, 80, 0, 528 * 512)
    srd(a, sWS, 4, 0, WS_END)
    srd(a, sSRC, 76, 0, E * 4)
    srd(a, sDST, 78, 0, E * 4)
    def rest():
        srd(a, sDBG, 86, 0, 256)
        srd(a, sEAT, 74, 0, E * 32)
        srd(a, sOUT, 84, 0, NBYTES)
        srd(a, sP, 4, 0, NBYTES + WS_P)
    def clear():
        a(f"s_cmp_lg_u32 s{sW}, 7"); a("s_cbranch_scc1 K_noclr")
        a("s_mov_b64 exec, 1")
        a(f"buffer_store_dword v30, v30, {sr(sWS,4)}, s10 offen sc0 sc1")
        a("s_mov_b64 exec, -1")
        a("K_noclr:")
    def count(tag):
        a(f"s_cmp_lg_u32 s{sW}, 7"); a(f"s_cbranch_scc1 K_nocnt{tag}")
        a("s_and_b32 s11, s2, 3"); a("s_lshl_b32 s11, s11, 6")
        a("s_mov_b64 exec, 1")
        a(f"buffer_atomic_add v31, v30, {sr(sDBG,4)}, s11 offen sc1")
        a("s_mov_b64 exec, -1")
        a(f"K_nocnt{tag}:")
    def flag(tag):
        a(f"s_cmp_lg_u32 s{sW}, 7"); a(f"s_cbranch_scc1 K_nofl{tag}")
        a("s_mov_b64 exec, 1")
        a(f"buffer_store_dword v31, v30, {sr(sWS,4)}, s10 offen sc0 sc1")
        a("s_mov_b64 exec, -1")
        a(f"K_nofl{tag}:")
    def xown(tag):
        for i, r in enumerate((26, 27, 29)):
            if i == 2:
                a(f"s_cmp_ge_u32 s{sW}, 4")
                a("s_cselect_b64 vcc, -1, 0")
                a(f"s_cselect_b32 s11, {XO+8192}, {XO+8192}+0") if False else None
                a(f"s_cselect_b32 s11, 0, 8192")
                a("v_cndmask_b32 v29, v29, v27, vcc")
                a("s_add_u32 s11, s11, s8")
                a(f"s_add_u32 m0, s11, {XO+8192}")
            else:
                a(f"s_add_u32 m0, s8, {XO + i*8192}")
            a("s_nop 0")
            a(f"buffer_load_dwordx4 v{r}, {sr(sX,4)}, s9 offen lds")
    def wdma(s):
        a(f"s_add_u32 m0, s{sRING}, {(s%5)*2048}")
        a(f"s_mov_b32 s11, {s*16384}")
        a(f"buffer_load_dwordx4 v17, {sr(sWM,4)}, s11 offen lds")
        a(f"buffer_load_dwordx4 v18, {sr(sWM,4)}, s11 offen offset:1024 lds")
    clear()
    a(f"s_cmp_ge_u32 s2, {NPW}")
    a("s_cbranch_scc1 K_notp")
    a(f"s_mul_i32 s12, s2, {48*512}")
    order = []
    wdma(0); order += ["w0"] * 2
    for i in range(3):
        a(f"s_add_u32 m0, s8, {XP + i*8192}")
        a(f"s_add_u32 s11, s12, {i*8192}")
        a(f"buffer_load_dwordx4 v25, {sr(sX,4)}, s11 offen lds")
    order += ["xp"] * 3
    a("s_barrier")
    for s in range(1, 5): wdma(s); order += [f"w{s}"] * 2
    xown("p"); order += ["xo"] * 3
    rest()
    a(f"v_lshrrev_b32 v34, 4, v{vLANE}")
    a(f"v_bfe_u32 v35, v{vLANE}, 2, 2")
    a("v_lshl_add_u32 v32, v34, 3, v35")
    a("v_lshl_add_u32 v32, v32, 6, v21")
    a(f"v_add_u32 v32, s{sRING}, v32")
    a(f"v_and_b32 v36, 15, v{vLANE}")
    a("v_xor_b32 v33, v34, v36")
    a("v_lshlrev_b32 v33, 4, v33")
    a("v_lshl_add_u32 v33, v36, 9, v33")
    a(f"v_add_u32 v33, {XP}, v33")
    a(f"s_mul_i32 s13, s{sW}, 3072")
    a(f"s_add_u32 s13, s13, {PST}")
    a("v_lshlrev_b32 v37, 6, v36")
    a("v_lshl_add_u32 v37, v34, 4, v37")
    a("v_add_u32 v37, s13, v37")
    a(f"v_add_u32 v38, s13, v{vL16}")
    PA = 48; XF = 80; WF = 104
    def need(tag): return len(order) - 1 - max(i for i, t in enumerate(order) if t == tag)
    def preads(s):
        b = s % 2
        if s: a(f"v_xor_b32 v39, {s*64}, v33")
        for u in range(2):
            for q in range(2):
                a(f"ds_read_b64_tr_b16 {vr(WF+8*b+4*u+2*q,2)}, v32 offset:{(s%5)*2048+q*256+u*8}")
        for nt in range(3): a(f"ds_read_b128 {vr(XF+12*b+4*nt,4)}, {'v39' if s else 'v33'} offset:{nt*8192}")
    a(f"s_waitcnt vmcnt({need('xp')})")
    count("p")
    a("s_barrier")
    st(1)
    preads(0)
    for s in range(8):
        b = s % 2
        if s < 7:
            a(f"s_waitcnt vmcnt({need(f'w{s+1}')})")
            preads(s + 1)
            a("s_waitcnt lgkmcnt(7)")
        else: a("s_waitcnt lgkmcnt(0)")
        wdma(s + 5); order += [f"w{s+5}"] * 2
        for nt in range(3):
            for u in range(2):
                o = PA + 8*nt + 4*u
                a(mf16(o, WF+8*b+4*u, XF+12*b+4*nt, "0" if s == 0 else o))
    a(f"s_mov_b32 s68, {hex(LOG2E_NEG)}"); a("s_mov_b32 s69, s68")
    a(f"s_add_u32 s12, s12, {WS_P}"); a("s_add_u32 s12, s12, s6")
    a("s_nop 3")
    for nt in range(3):
        o = PA + 8*nt
        for i in range(0, 8, 2): a(f"v_pk_mul_f32 {vr(o+i,2)}, {vr(o+i,2)}, s[68:69]")
        for i in range(4): a(f"v_cvt_pk_bf16_f32 v{XF+4*nt+i}, v{o+2*i}, v{o+2*i+1}")
        a(f"ds_write_b128 v37, {vr(XF+4*nt,4)} offset:{nt*1024}")
        a(f"ds_read_b128 {vr(120+4*nt,4)}, v38 offset:{nt*1024}")
    for nt in range(3):
        a(f"s_waitcnt lgkmcnt({4-2*nt})")
        a(f"s_add_u32 s11, s12, {nt*8192}")
        a(f"buffer_store_dwordx4 {vr(120+4*nt,4)}, v22, {sr(sP,4)}, s11 offen sc0 sc1")
    order += ["st"] * 3
    a("s_branch K_q")
    a("K_notp:")
    a(f"s_cmp_ge_u32 s2, {FRAG0}")
    a("s_cbranch_scc1 K_frag")
    a(f"s_sub_u32 s12, s2, {PART0}")
    a(f"s_mul_i32 s13, s12, {CHE*4}")
    a("v_lshlrev_b32 v32, 4, v0")
    DS_, SR_, GB_, SL_ = 48, 60, 72, 84
    for i in range(3):
        a(f"s_add_u32 s11, s13, {i*8192}")
        a(f"buffer_load_dwordx4 {vr(DS_+4*i,4)}, v32, {sr(sDST,4)}, s11 offen")
    for i in range(3):
        a(f"s_add_u32 s11, s13, {i*8192}")
        a(f"buffer_load_dwordx4 {vr(SR_+4*i,4)}, v32, {sr(sSRC,4)}, s11 offen")
    xown("c")
    rest()
    for i in range(4): a(f"v_mov_b32 v{40+i}, -1")
    for i in range(8): a(f"ds_write_b128 v32, v[40:43] offset:{i*8192}")
    a("v_lshlrev_b32 v33, 2, v0")
    a("v_add_u32 v34, 0x10000, v33")
    a("ds_write_b32 v34, v30")
    a("s_mov_b32 s13, 0x10000")
    a(f"s_movk_i32 s11, {CHE//4 - 1024}")
    a("v_cmp_gt_u32 s[68:69], s11, v0")
    a("s_waitcnt lgkmcnt(0)")
    a("s_barrier")
    for i in range(3):
        a(f"s_waitcnt vmcnt({8-i})")
        if i == 2:
            a("s_mov_b64 exec, s[68:69]")
            a("s_cbranch_execz K_p1")
        for k in range(4):
            r = 4*i + k
            a(f"v_and_b32 v{GB_+r}, 0x1ff, v{DS_+r}")
            a(f"v_lshl_add_u32 v34, v{GB_+r}, 2, s13")
            a(f"ds_add_rtn_u32 v{SL_+r}, v34, v31")
    a("K_p1:")
    a("s_mov_b64 exec, -1")
    a("s_waitcnt vmcnt(3)")
    count("c")
    st(1)
    for r in range(12):
        a(f"v_lshrrev_b32 v{DS_+r}, 9, v{DS_+r}")
        a(f"v_lshl_or_b32 v{SR_+r}, v{DS_+r}, 14, v{SR_+r}")
        a(f"v_add_u32 v34, {(r//4)*2048 + r%4}, v33")
        a(f"v_lshl_or_b32 v{SR_+r}, v34, 19, v{SR_+r}")
    a("s_waitcnt lgkmcnt(0)")
    for r in range(12):
        if r == 8:
            a("s_mov_b64 exec, s[68:69]")
            a("s_cbranch_execz K_p2")
        a(f"v_min_u32 v{SL_+r}, 31, v{SL_+r}")
        a(f"v_and_b32 v34, 7, v{SL_+r}")
        a(f"v_lshrrev_b32 v35, 3, v{SL_+r}")
        a("v_lshl_add_u32 v34, v34, 2, v35")
        a(f"v_lshl_add_u32 v34, v{GB_+r}, 5, v34")
        a("v_lshlrev_b32 v34, 2, v34")
        a(f"ds_write_b32 v34, v{SR_+r}")
    a("K_p2:")
    a("s_mov_b64 exec, -1")
    a("v_lshrrev_b32 v34, 3, v0")
    a("v_lshl_add_u32 v35, v34, 2, s13")
    a("v_and_b32 v36, 7, v0")
    a("v_lshlrev_b32 v36, 4, v36")
    a("v_lshl_add_u32 v36, v34, 12, v36")
    a("s_lshl_b32 s12, s12, 7")
    a(f"s_add_u32 s12, s12, {WS_CELL}")
    a("s_waitcnt lgkmcnt(0)")
    a("s_barrier")
    for i in range(0, 8, 2): a(f"ds_read2st64_b32 {vr(96+i,2)}, v35 offset0:{i} offset1:{i+1}")
    for i in range(8): a(f"ds_read_b128 {vr(48+4*i,4)}, v32 offset:{i*8192}")
    for i in range(8):
        a(f"s_waitcnt lgkmcnt({7-i})")
        a(f"v_cmp_ge_u32 vcc, 32, v{96+i}")
        a(f"s_add_u32 s11, s12, {i*64*4096}")
        a("s_nop 0")
        for k in range(4): a(f"v_cndmask_b32 v{48+4*i+k}, -2, v{48+4*i+k}, vcc")
        a(f"buffer_store_dwordx4 {vr(48+4*i,4)}, v36, {sr(sWS,4)}, s11 offen sc0 sc1")
    a("s_branch K_sig")
    a("K_frag:")
    srd(a, sWUP, 82, 0, 512 * 512)
    rest()
    xown("f")
    a(f"s_cmp_gt_u32 s2, {FRAG0+8}")
    a("s_cbranch_scc1 K_idle")
    a(f"s_sub_u32 s12, s2, {FRAG0}")
    a("v_lshlrev_b32 v32, 4, v0")
    a(f"v_bfe_u32 v33, v{vLANE}, 2, 2")
    a(f"v_bfe_u32 v35, v{vLANE}, 4, 1")
    a("s_cmp_eq_u32 s12, 8")
    a("s_cbranch_scc1 K_w3")
    a("s_lshl_b32 s13, s12, 14")
    for i in range(4):
        a(f"s_add_u32 m0, s8, {i*8192}")
        a(f"s_add_u32 s11, s13, {(i%2)*8192 + (i//2)*0x20000}")
        a(f"buffer_load_dwordx4 v32, {sr(sWUP,4)}, s11 offen lds")
    a(f"v_lshl_add_u32 v36, v{vH}, 4, v33")
    a("v_lshl_add_u32 v37, v35, 3, v36")
    a("v_lshl_add_u32 v38, v35, 2, v36")
    a("v_add_u32 v36, s6, v21")
    a("v_lshl_add_u32 v37, v37, 9, v36")
    a("v_lshl_add_u32 v38, v38, 9, v36")
    a(f"s_lshl_b32 s13, s{sW}, 14")
    a("s_lshl_b32 s12, s12, 11")
    a("s_add_u32 s13, s13, s12")
    a(f"s_add_u32 s13, s13, {WS_WU1}")
    a(f"s_add_u32 s12, s13, {WS_WU2-WS_WU1}")
    a("s_waitcnt vmcnt(0)")
    count("f")
    a("s_barrier")
    for u in range(2):
        for q in range(2):
            a(f"ds_read_b64_tr_b16 {vr(48+4*u+2*q,2)}, v37 offset:{q*2048+u*8}")
            a(f"ds_read_b64_tr_b16 {vr(56+4*u+2*q,2)}, v38 offset:{16384+q*4096+u*8}")
    a("s_waitcnt lgkmcnt(0)")
    for u in range(2):
        a(f"buffer_store_dwordx4 {vr(48+4*u,4)}, v{vL16}, {sr(sWS,4)}, s13 offen offset:{u*1024} sc0 sc1")
        a(f"buffer_store_dwordx4 {vr(56+4*u,4)}, v{vL16}, {sr(sWS,4)}, s12 offen offset:{u*1024} sc0 sc1")
    a("s_branch K_sig")
    a("K_w3:")
    a("s_mov_b32 m0, s8")
    a("s_mov_b32 s11, 0x40000")
    a(f"buffer_load_dwordx4 v32, {sr(sWM,4)}, s11 offen lds")
    a(f"v_lshl_add_u32 v36, v{vH}, 3, v33")
    a("v_lshlrev_b32 v36, 9, v36")
    a("v_lshl_add_u32 v36, v35, 5, v36")
    a("v_lshrrev_b32 v37, 1, v21")
    a("v_add3_u32 v36, v36, v37, s6")
    a(f"s_mov_b32 s12, {hex(LOG2E_NEG)}")
    a(f"s_add_u32 s13, s8, {WS_W3}")
    a("s_waitcnt vmcnt(0)")
    count("w")
    a("s_barrier")
    for q in range(2): a(f"ds_read_b64_tr_b16 {vr(48+2*q,2)}, v36 offset:{q*2048}")
    a("s_waitcnt lgkmcnt(0)")
    for i in range(4):
        a(f"v_lshlrev_b32 v52, 16, v{48+i}")
        a(f"v_and_b32 v53, 0xffff0000, v{48+i}")
        a("v_mul_f32 v52, s12, v52")
        a("v_mul_f32 v53, s12, v53")
        a(f"v_cvt_pk_bf16_f32 v{48+i}, v52, v53")
    a(f"buffer_store_dwordx4 v[48:51], v{vL16}, {sr(sWS,4)}, s13 offen sc0 sc1")
    a("s_branch K_sig")
    a("K_idle:")
    a("s_waitcnt vmcnt(0)")
    count("i")
    a("K_sig:")
    a("s_barrier")
    for s in range(8, 13): wdma(s)
    a("s_waitcnt vmcnt(10)")
    a("s_barrier")
    flag("a")
    for i in range(3): a(f"buffer_load_dword v{40+i}, v30, {sr(sWM,4)}, 0 offen")
    a("K_q:")
    st(2)
    a(f"v_bfe_u32 v35, v{vLANE}, 2, 2")
    a(f"v_lshl_add_u32 v32, v{vH}, 3, v35")
    a("v_lshlrev_b32 v32, 6, v32")
    a(f"v_bfe_u32 v34, v{vLANE}, 4, 1")
    a("v_lshl_add_u32 v32, v34, 5, v32")
    a("v_lshrrev_b32 v36, 1, v21")
    a(f"v_add3_u32 v32, v32, v36, s{sRING}")
    a(f"v_and_b32 v36, 3, v{vLANE}")
    a(f"v_bfe_u32 v37, v{vLANE}, 2, 1")
    a("v_add_u32 v37, v37, v34")
    a("v_lshl_add_u32 v36, v37, 3, v36")
    a(f"v_bfe_u32 v37, v{vLANE}, 3, 1")
    a("v_lshl_add_u32 v36, v37, 2, v36")
    a("v_min_u32 v36, 19, v36")
    for g in range(2):
        if g: a("v_add_u32 v36, 20, v36")
        a("v_and_b32 v37, 15, v36")
        a(f"v_xor_b32 v37, v37, v{vH}")
        a("v_lshlrev_b32 v37, 4, v37")
        a("v_lshl_add_u32 v37, v36, 9, v37")
        a(f"v_add_u32 v{44+g}, {XO}, v37")
    QA = 48; XF = 80; WF = 132
    def qreads(s):
        b = s % 2
        for k in range(2):
            for q in range(2):
                a(f"ds_read_b64_tr_b16 {vr(WF+8*b+4*k+2*q,2)}, v32 offset:{((s+8)%5)*2048+k*1024+q*256}")
            for g in range(2):
                a(f"v_xor_b32 v{46+g}, {(2*s+k)*32}, v{44+g}")
                a(f"ds_read_b128 {vr(XF+16*b+8*k+4*g,4)}, v{46+g}")
    a(f"s_waitcnt vmcnt({need('w8')})")
    a("s_barrier")
    qreads(0)
    for s in range(8):
        b = s % 2
        if s < 7:
            a(f"s_waitcnt vmcnt({need(f'w{s+9}')})")
            if s + 9 == 13:
                a("s_barrier")
                a(f"s_cmp_ge_u32 s2, {NPW}"); a("s_cbranch_scc1 K_noflb")
                flag("p")
                a("K_noflb:")
                a(f"s_cmp_lg_u32 s{sW}, 0"); a("s_cbranch_scc1 K_nopc")
                a(f"v_and_b32 v43, 3, v{vLANE}\nv_lshlrev_b32 v43, 6, v43")
                a(f"buffer_load_dword v42, v43, {sr(sDBG,4)}, 0 offen")
                a("K_nopc:")
            a("s_waitcnt lgkmcnt(4)")
            qreads(s + 1)
            a("s_waitcnt lgkmcnt(8)")
        else: a("s_waitcnt lgkmcnt(0)")
        if s + 13 < 16: wdma(s + 13); order += [f"w{s+13}"] * 2
        for k in range(2):
            for g in range(2):
                a(mf32(QA+16*g, XF+16*b+8*k+4*g, WF+8*b+4*k, "0" if s == 0 and k == 0 else QA+16*g))
    a(f"s_cmp_lg_u32 s{sW}, 0"); a("s_cbranch_scc1 K_nopa")
    a(f"s_mov_b32 s11, {SPIN}")
    a("K_pc:")
    a("s_waitcnt vmcnt(0)")
    a("v_cmp_gt_u32 vcc, 64, v42")
    a("s_cbranch_vccz K_pc1")
    a(f"buffer_load_dword v42, v43, {sr(sDBG,4)}, 0 offen sc0 sc1")
    a("s_sub_u32 s11, s11, 1"); a("s_cbranch_scc0 K_pc")
    a("K_pc1:")
    a(f"v_min_u32 v43, {NPROD_A-1}, v{vLANE}")
    a("v_lshlrev_b32 v43, 7, v43")
    a(f"s_mov_b32 s12, {WS_FLAG + PART0*128}")
    a(f"buffer_load_dword v42, v43, {sr(sWS,4)}, s12 offen sc0 sc1")
    a("K_nopa:")
    a(f"s_mov_b32 s68, {hex(LOG2E_NEG)}"); a("s_mov_b32 s69, s68")
    a(f"v_add_u32 v36, s{sRING}, v{vL16}")
    a("s_nop 7"); a("s_nop 1")
    for g in range(2):
        o = QA + 16*g
        for i in range(0, 12, 2): a(f"v_pk_mul_f32 {vr(o+i,2)}, {vr(o+i,2)}, s[68:69]")
        for i in range(6): a(f"v_cvt_pk_bf16_f32 v{XF+8*g+i}, v{o+2*i}, v{o+2*i+1}")
        a(f"v_mov_b32 v{XF+8*g+6}, 0"); a(f"v_mov_b32 v{XF+8*g+7}, 0")
        a("s_mov_b32 exec_hi, 0")
        a(f"v_mov_b32 v{XF+8*g+4}, 0"); a(f"v_mov_b32 v{XF+8*g+5}, 0")
        a("s_mov_b64 exec, -1")
        a(f"ds_write_b128 v36, {vr(XF+8*g,4)} offset:{g*2048}")
        a(f"ds_write_b128 v36, {vr(XF+8*g+4,4)} offset:{g*2048+1024}")
```

```python
from common import *
aA, aS, aL, aP0, aP1, aE, L4V = 1, 2, 3, 4, 5, 8, 10
ACC, D, EE, MSG, PF, EA, OH, S, Q, W3, ID, WU = 16, 48, 80, 96, 104, 112, 116, 124, 132, 148, 156, 164
SLOT = 5120; RINGW = 2 * SLOT
BS = 2304
def mf32(d, x, y, c): return f"v_mfma_f32_32x32x16_bf16 {vr(d,16)}, {vr(x,4)}, {vr(y,4)}, {c if isinstance(c,str) else vr(c,16)}"

class Loop:
    def __init__(self, a, sg, opt=()):
        self.a = a; self.sg = sg; self.opt = opt
    def rdO(self, off):
        return [f"ds_read_b128 {vr(OH,4)}, v{aA} offset:{off}", f"ds_read_b128 {vr(OH+4,4)}, v{aA} offset:{off+512}"]
    def rdE(self, slot): return f"ds_read_b128 {vr(EA,4)}, v{aE} offset:{slot*SLOT+4096}"
    def rdP(self, slot, t):
        return [f"ds_read_b128 {vr(PF,4)}, v{aP0} offset:{slot*SLOT+t*2048}", f"ds_read_b128 {vr(PF+4,4)}, v{aP1} offset:{slot*SLOT+t*2048}"]
    def rdS(self, off):
        return [f"ds_read_b64_tr_b16 {vr(S+4*m+2*q,2)}, v{aS} offset:{off+m*256+q*128}" for m in range(2) for q in range(2)]
    def rdL(self, off, dst=L4V):
        o = (off + 1536) // 256
        return [f"ds_read2st64_b32 {vr(dst,2)}, v{aL} offset0:{o} offset1:{o+1}", f"ds_read_b32 v{dst+2}, v{aL} offset:{off+2048}"]
    def dma(self, slot, lv=L4V):
        g = self.sg; L = []
        for k, (t, i) in enumerate(((0, 0), (1, 0), (0, 1), (1, 1))):
            L.append((f"s_add_u32 m0, s{g['RING']}, {slot*SLOT}" if k == 0 else None, f"buffer_load_dwordx4 v{lv+i}, {sr(g['P'],4)}, s{g['C0']+2*t+i} offen offset:{t*2048+i*1024}{g.get('SC','')} lds"))
        L.append((f"s_add_u32 m0, s{g['RING']}, {slot*SLOT+4096}", f"buffer_load_dwordx4 v{lv+2}, {sr(g['EAT'],4)}, 0 offen lds"))
        return L
    def M1(self, t):
        d = D + 16 * t
        return [mf32(d, OH, Q+8*t, "0"), mf32(d, OH+4, Q+8*t+4, d), mf32(d, EA, W3+4*t, d), mf32(d, PF, ID, d), mf32(d, PF+4, ID+4, d)]
    def M2(self, t):
        return [mf32(ACC+16*t, MSG, S, ACC+16*t), mf32(ACC+16*t, MSG+4, S+4, ACC+16*t)]
    def V(self, t, ins):
        d = D + 16 * t
        ops = [f"v_exp_f32 v{EE+i}, v{d+i}" for i in range(16)]
        ops += [f"v_pk_add_f32 {vr(EE+i,2)}, {vr(EE+i,2)}, 1.0 op_sel_hi:[1,0]" for i in range(0, 16, 2)]
        ops += [f"v_rcp_f32 v{EE+i}, v{EE+i}" for i in range(16)]
        ops += [f"v_pk_mul_f32 {vr(EE+i,2)}, {vr(EE+i,2)}, {vr(d+i,2)}" for i in range(0, 16, 2)]
        ops += [f"v_cvt_pk_bf16_f32 v{MSG+i}, v{EE+2*i}, v{EE+2*i+1}" for i in range(8)]
        for i, o in enumerate(ops):
            for x in ins.get(i, []):
                if "nods" in self.opt and x.startswith("ds_"): continue
                if "novm" in self.opt and x.startswith("buffer_"): continue
                if "nosalu" in self.opt and (x.startswith("s_add_u32 m0") or x.startswith("s_waitcnt")): continue
                self.a(x)
            self.a(o)
    def block(self, par, P):
        g = self.sg; off = par * BS
        def add(i, x): ins.setdefault(i, []).append(x)
        ins = {}
        m1, m2 = self.M1(1), self.M2(1)
        for i, x in zip(P["m2"], m2): add(i, x)
        for i, x in zip(P["p"], self.rdP(par, 1)): add(i, x)
        for i, x in zip(P["l"], self.rdL(off + 2 * BS)): add(i, x)
        for i, x in zip(P["s"], self.rdS(off)): add(i, x)
        for i, x in zip(P["o"], self.rdO(off + BS)): add(i, x)
        add(P["sel"], f"s_add_u32 s{g['T']}, s{g['B']}, 2"); add(P["sel"], f"s_cmp_lt_u32 s{g['T']}, s{g['NB']}")
        add(P["sel"] + 1, f"s_cselect_b32 s{g['P']+2}, {g['PN']}, 0"); add(P["sel"] + 1, f"s_cselect_b32 s{g['EAT']+2}, {g['EN']}, 0")
        if "prio" in self.opt:
            add(P["sel"] + 1, f"s_cbranch_scc1 L_pr{par}\ns_setprio 0\nL_pr{par}:")
        add(P["m1"][3], "s_waitcnt lgkmcnt(0)")
        for i, x in zip(P["m1"], m1): add(i, x)
        prev = None
        for i, (x, y) in zip(P["d"], self.dma(par)):
            if x and prev == i: add(i, x); add(i, "s_nop 0")
            elif x: add(i - 1, x)
            add(i, y); prev = i
        self.V(0, ins)
        ins = {}
        m1, m2 = self.M1(0), self.M2(0)
        for i, x in zip(P["m2"], m2): add(i, x)
        add(P["p2"][0], "s_waitcnt vmcnt(5)")
        for i, x in zip(P["p2"], [self.rdE(1 - par)] + self.rdP(1 - par, 0)): add(i, x)
        add(P["m1"][2], "s_waitcnt lgkmcnt(0)")
        for i, x in zip(P["m1"], m1): add(i, x)
        if par == 1:
            for k, r in enumerate((aA, aS, aL)): add(P["adv"], f"v_add_u32 v{r}, {2*BS if 'noadv' not in self.opt else 0}, v{r}")
        add(P["cnt"], f"s_add_u32 s{g['B']}, s{g['B']}, 1"); add(P["cnt"] + 1, f"s_cmp_ge_u32 s{g['B']}, s{g['NB']}")
        self.V(1, ins)
PL1 = dict(m2=(0, 3), m1=(6, 9, 24, 27, 30), p=(16, 16), l=(16, 16), s=(16,)*4, o=(16, 16), sel=16, d=(40, 40, 40, 40, 41), p2=(16, 16, 16), adv=48, cnt=16)
PL0 = dict(m2=(0, 3), m1=(6, 9, 24, 27, 30), p=(1, 2), l=(4, 5), s=(7, 8, 10, 11), o=(12, 13), sel=14, d=(31, 33, 35, 37, 39), p2=(1, 2, 4), adv=48, cnt=34)
```

```python
import os, sys
from common import *
from loop import *
from front import *
X = os.environ.get('X', '').split(',')
NAME = "standalone__mpnn_edge_mlp__graph_kernel"
OOB = 0x7ff00000
sFIRST = 13
def gen(dbg=False):
    a = Asm()
    def st(n):
        if dbg:
            a(f"s_memrealtime s[98:99]\ns_waitcnt lgkmcnt(0)\ns_mov_b32 s{71+n}, s98")
    a(NAME + ":")
    gen_front(a, lambda n: st(n + 12) if n < 3 else None, dbg)
    sg = dict(RING=sRING, P=sP, EAT=sEAT, C0=sC0, T=sT, B=sB, NB=sNB, PN=NBYTES + WS_P, EN=E * 32, SC=" sc1" if "nosc" not in X else "")
    L = Loop(a, sg, ("prio",) if "noprio" not in X else ())
    RC = D
    a(f"s_lshl_b32 s11, s{sWC}, 7")
    for t in range(2):
        for i in range(2): a(f"s_add_u32 s{sC0+2*t+i}, s11, {WS_P + 64*t - t*2048 - i*1024}")
    a(f"s_lshl_b32 s{sGB}, s{sG}, 8")
    a(f"s_add_u32 s{sGB}, s{sGB}, s2")
    a(f"s_lshl_b32 s{sCELL}, s{sGB}, 12")
    a(f"s_add_u32 s{sCELL}, s{sCELL}, {WS_CELL}")
    a(f"v_lshlrev_b32 v52, 3, v{vH}")
    a(f"v_sub_u32 v52, v{vJ}, v52")
    a("v_and_b32 v53, 1, v52")
    a("v_lshlrev_b32 v53, 4, v53")
    a("v_mov_b32 v54, 0x3f80")
    a("v_lshlrev_b32 v53, v53, v54")
    a("v_ashrrev_i32 v52, 1, v52")
    for m in range(2):
        for dw in range(4): a(f"v_cmp_eq_u32 s[{62+2*dw}:{63+2*dw}], {8*m+dw}, v52")
        for dw in range(4): a(f"v_cndmask_b32 v{ID+4*m+dw}, 0, v53, s[{62+2*dw}:{63+2*dw}]")
    a(f"v_bfe_u32 v52, v{vLANE}, 2, 2")
    a(f"v_xor_b32 v52, v52, v{vH}")
    a("v_lshlrev_b32 v52, 4, v52")
    a(f"v_lshl_add_u32 v52, v{vJ}, 6, v52")
    a(f"v_add_u32 v{aP0}, s{sRING}, v52")
    a(f"v_xor_b32 v{aP1}, 32, v{aP0}")
    a(f"v_bfe_u32 v52, v{vLANE}, 3, 1")
    a(f"v_xor_b32 v52, v52, v{vH}")
    a("v_lshlrev_b32 v52, 4, v52")
    a(f"v_lshl_add_u32 v52, v{vJ}, 5, v52")
    a(f"v_add_u32 v{aE}, s{sRING}, v52")
    a(f"s_mul_i32 s{sSB}, s{sG}, {NBLK*BS}")
    a(f"s_add_u32 s{sSB}, s{sSB}, {STR}")
    a(f"s_mov_b32 s{sWIN}, 0")
    a(f"s_mov_b32 s{sSUB}, -1")
    a(f"s_mov_b32 s{sFIRST}, 1")
    a("K_round:")
    for i in range(4): a(f"v_mov_b32 v{56+i}, 0")
    a(f"s_mul_i32 s{sT}, s{sW}, {BS}")
    a(f"s_add_u32 s{sT}, s{sT}, {STR}")
    a(f"v_add_u32 v52, s{sT}, v{vL16}")
    a(f"v_lshl_add_u32 v53, v{vLANE}, 3, s{sT}")
    for i in range(3):
        a(f"ds_write_b128 v52, v[56:59] offset:{i*8*BS}")
        a(f"ds_write_b64 v53, v[56:57] offset:{i*8*BS+1024}")
    a(f"s_cmp_ge_u32 s{sW}, 2")
    a("s_cbranch_scc1 K_z1")
    a(f"ds_write_b128 v52, v[56:59] offset:{24*BS}")
    a(f"ds_write_b64 v53, v[56:57] offset:{24*BS+1024}")
    a("K_z1:")
    a(f"v_add_u32 v{aA}, s{sSB}, v{vL16}")
    a(f"v_lshl_add_u32 v{aL}, v{vLANE}, 2, s{sSB}")
    a(f"v_bfe_u32 v52, v{vLANE}, 4, 1")
    a(f"v_bfe_u32 v53, v{vLANE}, 1, 1")
    a("v_lshl_add_u32 v52, v52, 1, v53")
    a("v_lshlrev_b32 v52, 9, v52")
    a(f"v_bfe_u32 v53, v{vLANE}, 2, 2")
    a(f"v_lshl_add_u32 v53, v{vH}, 2, v53")
    a("v_lshl_add_u32 v52, v53, 4, v52")
    a(f"v_and_b32 v53, 1, v{vLANE}")
    a("v_lshl_add_u32 v52, v53, 3, v52")
    a(f"v_add_u32 v{aS}, s{sSB}, v52")
    a(f"s_cmp_eq_u32 s{sFIRST}, 0")
    a("s_cbranch_scc1 K_slowload")
    a(f"s_cmp_lg_u32 s{sW}, 0"); a("s_cbranch_scc1 K_pa1")
    a(f"s_mov_b32 s11, {SPIN}")
    a("K_pa:")
    a("s_waitcnt vmcnt(0)")
    a("v_cmp_ne_u32 vcc, 1, v42")
    a("s_cbranch_vccz K_pa1")
    a(f"buffer_load_dword v42, v43, {sr(sWS,4)}, s12 offen sc0 sc1")
    a("s_sub_u32 s11, s11, 1"); a("s_cbranch_scc0 K_pa")
    a("K_pa1:")
    a("s_waitcnt lgkmcnt(0)")
    a("s_barrier")
    st(1)
    a(f"buffer_load_dwordx4 {vr(RC,4)}, v{vT16}, {sr(sWS,4)}, s{sCELL} offen sc1")
    a(f"s_lshl_b32 s11, s{sW}, 5")
    a(f"v_add_u32 v43, s11, v{vJ}")
    a(f"v_min_u32 v43, {NPW-1}, v43")
    a("v_lshlrev_b32 v43, 7, v43")
    a(f"s_mov_b32 s12, {WS_FLAG}")
    a(f"buffer_load_dword v42, v43, {sr(sWS,4)}, s12 offen sc0 sc1")
    a(f"s_lshl_b32 s11, s{sWC}, 11")
    a(f"s_add_u32 s11, s11, {WS_W3}")
    for t in range(2): a(f"buffer_load_dwordx4 {vr(W3+4*t,4)}, v{vL16}, {sr(sWS,4)}, s11 offen offset:{t*1024} sc1")
    a(f"s_lshl_b32 s10, s{sW}, 14")
    def wu(base):
        for f in range(16):
            if f % 4 == 0: a(f"s_add_u32 s11, s10, {base + f*1024}")
            a(f"buffer_load_dwordx4 {vr(WU+4*f,4)}, v{vL16}, {sr(sWS,4)}, s11 offen offset:{(f%4)*1024} sc1")
    wu(WS_WU1)
    a(f"s_mul_i32 s11, s{sWC}, {2*RINGW}")
    a(f"s_lshl_b32 s{sT}, s{sG}, 11")
    a(f"s_add_u32 s11, s11, s{sT}")
    a(f"v_add_u32 v52, s11, v{vL16}")
    for t in range(2):
        for m in range(2): a(f"ds_read_b128 {vr(Q+8*t+4*m,4)}, v52 offset:{t*RINGW+m*1024}")
    a("v_bfe_u32 v55, v0, 3, 5")
    a(f"v_mul_u32_u24 v55, {CHE*32}, v55")
    a("s_waitcnt vmcnt(19)")
    a("K_havrec:")
    st(2)
    for k in range(4): a(f"v_cmp_gt_u32 s[{62+2*k}:{63+2*k}], -2, v{RC+k}")
    a(f"v_cmp_eq_u32 vcc, -2, v{RC}")
    a("s_bcnt1_i32_b64 s86, s[62:63]")
    a("s_bcnt1_i32_b64 s87, s[64:65]")
    a("s_bcnt1_i32_b64 s88, s[66:67]")
    a("s_bcnt1_i32_b64 s89, s[68:69]")
    a("s_add_u32 s87, s87, s86")
    a("s_add_u32 s88, s88, s87")
    a("s_add_u32 s89, s89, s88")
    a("v_mov_b32 v64, s89")
    a("v_mov_b32 v65, vcc_lo")
    a("v_mov_b32 v66, vcc_hi")
    a(f"s_lshl_b32 s{sT}, s{sW}, 4")
    a(f"s_add_u32 s{sT}, s{sT}, {MISC}")
    a(f"v_mov_b32 v68, s{sT}")
    a("ds_write_b96 v68, v[64:66]")
    a(f"v_and_b32 v68, 7, v{vLANE}")
    a("v_lshlrev_b32 v68, 4, v68")
    a(f"v_add_u32 v68, {MISC}, v68")
    a("s_waitcnt lgkmcnt(0)")
    a("s_barrier")
    a("ds_read_b96 v[64:66], v68")
    for k in range(4):
        a(f"v_mbcnt_lo_u32_b32 v{60+k}, s{62+2*k}, 0")
        a(f"v_mbcnt_hi_u32_b32 v{60+k}, s{63+2*k}, v{60+k}")
    a("s_waitcnt lgkmcnt(0)")
    for w in range(8): a(f"v_readlane_b32 s{90+w}, v64, {w}")
    a("v_or_b32 v65, v65, v66")
    a("v_cmp_ne_u32 vcc, 0, v65")
    a("s_add_u32 s91, s91, s90"); a("s_add_u32 s92, s92, s91"); a("s_add_u32 s93, s93, s92")
    a("s_add_u32 s95, s95, s94"); a("s_add_u32 s96, s96, s95"); a("s_add_u32 s97, s97, s96")
    a(f"s_max_u32 s{sNWIN}, s93, s97")
    a(f"s_cmp_eq_u32 s{sG}, 0")
    a("s_cselect_b32 s90, s90, s94"); a("s_cselect_b32 s91, s91, s95"); a("s_cselect_b32 s92, s92, s96"); a("s_cselect_b32 s93, s93, s97")
    a(f"s_cmp_eq_u32 s{sWC}, 1"); a("s_cselect_b32 s94, s90, 0")
    a(f"s_cmp_eq_u32 s{sWC}, 2"); a("s_cselect_b32 s94, s91, s94")
    a(f"s_cmp_eq_u32 s{sWC}, 3"); a("s_cselect_b32 s94, s92, s94")
    a(f"s_sub_u32 s94, s94, s{sWIN}")
    a(f"s_sub_i32 s{sCNT}, s93, s{sWIN}")
    a(f"s_max_i32 s{sCNT}, s{sCNT}, 0")
    a(f"s_min_i32 s{sCNT}, s{sCNT}, {CAP}")
    a(f"s_add_u32 s{sNB}, s{sCNT}, 31")
    a(f"s_lshr_b32 s{sNB}, s{sNB}, 5")
    a(f"s_cmp_eq_u32 s{sFIRST}, 0")
    a("s_cbranch_scc1 K_nomark")
    a(f"s_mov_b32 s{sM0}, 0"); a(f"s_mov_b32 s{sM1}, 0")
    a("s_cbranch_vccz K_nomark")
    a(f"v_lshrrev_b32 v52, 3, v{vLANE}")
    a("v_lshlrev_b32 v52, 4, v52")
    a(f"v_and_b32 v53, 7, v{vLANE}")
    a("v_add_u32 v52, v52, v53")
    a(f"v_add_u32 v52, {MISC+4}, v52")
    a("ds_read_u8 v52, v52")
    a("s_waitcnt lgkmcnt(0)")
    a(f"v_cmp_ne_u32 s[{sM0}:{sM1}], 0, v52")
    a("K_nomark:")
    a("s_add_u32 s95, s94, s86"); a("s_add_u32 s96, s94, s87"); a("s_add_u32 s97, s94, s88")
    a(f"s_movk_i32 s93, {CAP}")
    a("v_mov_b32 v54, 0x3f80")
    for k in range(4):
        a(f"v_add_u32 v{60+k}, s{94+k}, v{60+k}")
        a(f"v_cmp_gt_u32 vcc, s93, v{60+k}")
        a(f"s_and_b64 exec, vcc, s[{62+2*k}:{63+2*k}]")
        a(f"s_cbranch_execz K_x{k}")
        a(f"v_lshrrev_b32 v64, 5, v{60+k}")
        a(f"v_mul_u32_u24 v64, {BS}, v64")
        a(f"v_and_b32 v65, 31, v{60+k}")
        a(f"v_add_u32 v64, s{sSB}, v64")
        a(f"v_lshl_add_u32 v66, v65, 4, v64")
        a(f"v_lshl_add_u32 v67, v65, 3, v64")
        a(f"v_and_b32 v72, 0x3fff, v{RC+k}")
        a(f"v_bfe_u32 v69, v65, 2, 2")
        a(f"v_lshlrev_b32 v69, 4, v69")
        a(f"v_lshl_add_u32 v72, v72, 9, v69")
        a(f"v_xor_b32 v73, 16, v72")
        a(f"v_xor_b32 v74, 32, v72")
        a(f"v_xor_b32 v75, 48, v72")
        a(f"ds_write_b128 v66, v[72:75] offset:1536")
        a(f"v_lshrrev_b32 v70, 19, v{RC+k}")
        a(f"v_lshl_add_u32 v70, v70, 5, v55")
        a(f"v_bfe_u32 v69, v65, 3, 1")
        a(f"v_lshl_add_u32 v70, v69, 4, v70")
        a(f"v_xor_b32 v71, 16, v70")
        a(f"ds_write_b64 v67, v[70:71] offset:2048")
        a(f"v_bfe_u32 v68, v{RC+k}, 17, 2")
        a(f"v_lshl_add_u32 v68, v68, 9, v66")
        a(f"v_bfe_u32 v69, v{RC+k}, 14, 3")
        a(f"v_lshl_add_u32 v68, v69, 1, v68")
        a(f"ds_write_b16 v68, v54")
        a(f"K_x{k}:")
        a("s_mov_b64 exec, -1")
    a(f"s_cmp_lg_u32 s{sWC}, 3")
    a("s_cbranch_scc1 K_nopad")
    a(f"s_and_b32 s{sT}, s{sCNT}, 31")
    a("s_cbranch_scc0 K_nopad")
    a(f"s_lshr_b32 s94, s{sCNT}, 5")
    a(f"s_mul_i32 s94, s94, {BS}")
    a(f"s_add_u32 s94, s94, s{sSB}")
    a(f"v_lshl_add_u32 v66, v{vJ}, 4, s94")
    a(f"v_lshl_add_u32 v67, v{vJ}, 3, s94")
    for i in range(4): a(f"v_mov_b32 v{72+i}, {hex(OOB)}")
    a(f"v_cmp_le_u32 vcc, s{sT}, v{vJ}")
    a("s_mov_b64 exec, vcc")
    a("ds_write_b64 v67, v[72:73] offset:2048")
    a("ds_write_b128 v66, v[72:75] offset:1536")
    a("s_mov_b64 exec, -1")
    a("K_nopad:")
    st(3)
    a(f"s_cmp_eq_u32 s{sFIRST}, 0")
    a("s_cbranch_scc1 K_pb1")
    a("s_waitcnt vmcnt(18)")
    a(f"s_mov_b32 s11, {SPIN}")
    a("K_pb:")
    a("v_cmp_ne_u32 vcc, 1, v42")
    a("s_cbranch_vccz K_pb1")
    a(f"buffer_load_dword v42, v43, {sr(sWS,4)}, s12 offen sc0 sc1")
    a("s_waitcnt vmcnt(0)")
    a("s_sub_u32 s11, s11, 1"); a("s_cbranch_scc0 K_pb")
    a("K_pb1:")
    a("s_waitcnt lgkmcnt(0)")
    a("s_barrier")
    st(4)
    for x in L.rdL(0) + L.rdL(BS, 64): a(x)
    def dma(slot, lv, nb):
        a(f"s_cmp_gt_u32 s{sNB}, {nb}")
        a(f"s_cselect_b32 s{sP+2}, {sg['PN']}, 0")
        a(f"s_cselect_b32 s{sEAT+2}, {sg['EN']}, 0")
        for x, y in L.dma(slot, lv):
            if x: a(x); a("s_nop 0")
            a(y)
    a("s_waitcnt lgkmcnt(2)")
    dma(0, L4V, 0)
    a("s_waitcnt lgkmcnt(0)")
    dma(1, 64, 1)
    a(f"s_cmp_eq_u32 s{sFIRST}, 0")
    a("s_cbranch_scc1 K_nou")
    a(f"v_and_b32 v44, 15, v{vLANE}")
    a(f"v_lshrrev_b32 v45, 4, v{vLANE}")
    a("v_min_u32 v46, 7, v44")
    for r, n, base in ((40, 44, XO), (41, 46, XO + 32*512)):
        a(f"v_xor_b32 v47, v45, v{n}")
        a("v_lshlrev_b32 v47, 4, v47")
        a(f"v_lshl_add_u32 v47, v{n}, 9, v47")
        a(f"v_add_u32 v{r}, {base}, v47")
    UF = 48
    def ureads(T):
        b = T % 4
        a(f"v_xor_b32 v44, {T*64}, v40"); a(f"v_xor_b32 v45, {T*64}, v41")
        a(f"ds_read_b128 {vr(UF+12*b,4)}, v44"); a(f"ds_read_b128 {vr(UF+12*b+4,4)}, v44 offset:8192"); a(f"ds_read_b128 {vr(UF+12*b+8,4)}, v45")
    for T in range(3): ureads(T)
    for T in range(8):
        if T + 3 < 8: ureads(T + 3)
        a(f"s_waitcnt vmcnt({10 + 14 - 2*T}) lgkmcnt({3*min(3, 7-T)})")
        for nt in range(3):
            for u in range(2):
                o = UA + 8*nt + 4*u
                a(mf16(o, WU+8*T+4*u, UF+12*(T%4)+4*nt, "0" if T == 0 else o))
    wu(WS_WU2)
    for i in range(32): a(f"v_mov_b32 v{ACC+i}, 0")
    a("s_waitcnt vmcnt(21)")
    a("s_branch K_go")
    a("K_nou:")
    a("s_waitcnt vmcnt(5)")
    a("K_go:")
    st(5)
    a(f"s_cmp_eq_u32 s{sNB}, 0")
    a("s_cbranch_scc1 K_rend")
    for x in L.rdO(0) + [L.rdE(0)] + L.rdP(0, 0): a(x)
    for i in range(8): a(f"v_mov_b32 v{MSG+i}, 0")
    for i in range(8): a(f"v_mov_b32 v{S+i}, 0")
    a(f"s_mov_b32 s{sB}, 0")
    if "noprio" not in X: a("s_setprio 1")
    a("s_waitcnt lgkmcnt(0)")
    for x in L.M1(0): a(x)
    a("s_nop 7"); a("s_nop 3")
    a("K_loop:")
    L.block(0, PL1)
    a("s_cbranch_scc1 K_lend")
    L.block(1, PL1)
    a("s_cbranch_scc0 K_loop")
    a("K_lend:")
    a("s_nop 1")
    for x in L.M2(1): a(x)
    a("K_rend:")
    st(6)
    a(f"s_mov_b32 s{sFIRST}, 0")
    a(f"s_add_u32 s{sWIN}, s{sWIN}, {CAP}")
    a(f"s_cmp_lt_u32 s{sWIN}, s{sNWIN}")
    a("s_cbranch_scc1 K_again")
    a(f"s_or_b32 s{sT}, s{sM0}, s{sM1}")
    a("s_cbranch_scc0 K_final")
    a(f"s_mov_b32 s{sWIN}, 0")
    a(f"s_add_u32 s{sSUB}, s{sSUB}, 1")
    a(f"s_cmp_lt_u32 s{sSUB}, 5")
    a("s_cbranch_scc1 K_samech")
    a(f"s_bitset0_b32 s{sM0}, s{sCH}")
    a(f"s_bitset0_b32 s{sM1}, s{sCH}")
    a(f"s_mov_b32 s{sSUB}, 0")
    a(f"s_or_b32 s{sT}, s{sM0}, s{sM1}")
    a("s_cbranch_scc0 K_final")
    a("K_samech:")
    a(f"s_ff1_i32_b32 s{sCH}, s{sT}")
    a("K_again:")
    a("s_nop 7"); a("s_nop 7")
    a("s_waitcnt vmcnt(0) lgkmcnt(0)")
    a("s_barrier")
    a("s_branch K_round")
    a("K_slowload:")
    a(f"s_cmp_lg_u32 s{sSUB}, -1")
    a("s_cbranch_scc1 K_raw")
    a(f"buffer_load_dwordx4 {vr(RC,4)}, v{vT16}, {sr(sWS,4)}, s{sCELL} offen sc1")
    a("v_bfe_u32 v55, v0, 3, 5")
    a(f"v_mul_u32_u24 v55, {CHE*32}, v55")
    a("s_waitcnt vmcnt(0)")
    a("s_branch K_havrec")
    a("K_raw:")
    a(f"s_mul_i32 s{sT}, s{sCH}, {CHE*4}")
    a(f"s_lshl_b32 s94, s{sSUB}, 12")
    a(f"s_add_u32 s{sT}, s{sT}, s94")
    a(f"buffer_load_dwordx4 {vr(RC,4)}, v{vT16}, {sr(sSRC,4)}, s{sT} offen")
    a(f"buffer_load_dwordx4 v[64:67], v{vT16}, {sr(sDST,4)}, s{sT} offen")
    a(f"s_mul_i32 s95, s{sCH}, {CHE*32}")
    a("v_mov_b32 v55, s95")
    a(f"s_cmp_eq_u32 s{sG}, 0")
    a(f"s_cselect_b32 s95, s{sM0}, s{sM1}")
    a(f"s_bitcmp1_b32 s95, s{sCH}")
    a(f"s_cselect_b32 s95, s{sGB}, -1")
    a(f"v_add_u32 v68, s94, v{vT16}")
    a("v_lshrrev_b32 v68, 2, v68")
    a(f"s_movk_i32 s96, {CHE}")
    a("v_cmp_gt_u32 s[62:63], s96, v68")
    a("s_waitcnt vmcnt(0)")
    for k in range(4):
        a(f"v_and_b32 v69, 0x1ff, v{64+k}")
        a("v_cmp_eq_u32 vcc, s95, v69")
        a(f"v_lshrrev_b32 v69, 9, v{64+k}")
        a(f"v_lshl_or_b32 v{RC+k}, v69, 14, v{RC+k}")
        a(f"v_add_u32 v69, {k}, v68")
        a(f"v_lshl_or_b32 v{RC+k}, v69, 19, v{RC+k}")
        a("s_and_b64 vcc, vcc, s[62:63]")
        a(f"v_cndmask_b32 v{RC+k}, -1, v{RC+k}, vcc")
    a("s_branch K_havrec")
    a("K_final:")
    a("s_lshl_b32 s10, s2, 9")
    a(f"s_lshl_b32 s94, s{sW}, 6")
    a("s_add_u32 s10, s10, s94")
    a(f"v_and_b32 v1, 15, v{vLANE}")
    a(f"v_lshrrev_b32 v2, 4, v{vLANE}")
    a(f"v_lshrrev_b32 v3, 2, v{vLANE}")
    a(f"v_and_b32 v4, 3, v{vLANE}")
    a("v_lshlrev_b32 v5, 18, v3")
    a("v_lshl_add_u32 v104, v4, 4, v5")
    a("v_cmp_le_u32 vcc, 4, v3")
    a(f"v_add_u32 v105, {hex(16<<18)}, v104")
    a(f"v_subrev_u32 v5, {hex((4<<18) - (256<<9))}, v104")
    a("v_cndmask_b32 v105, v105, v5, vcc")
    a(f"v_add_u32 v106, {hex((12<<18) + (256<<9))}, v104")
    a(f"v_and_b32 v5, 7, v{vJ}")
    a(f"v_xor_b32 v5, v5, v{vH}")
    a("v_lshlrev_b32 v5, 4, v5")
    a(f"v_lshl_add_u32 v5, v{vJ}, 7, v5")
    a(f"v_add_u32 v5, s{sRING}, v5")
    a(f"s_mov_b32 s94, {hex(LN2_NEG)}"); a("s_mov_b32 s95, s94")
    a("s_waitcnt vmcnt(0)")
    for tm in range(4):
        for i in range(0, 8, 2): a(f"v_pk_mul_f32 {vr(ACC+8*tm+i,2)}, {vr(ACC+8*tm+i,2)}, s[94:95]")
        for i in range(4): a(f"v_cvt_pk_bf16_f32 v{D+4*tm+i}, v{ACC+8*tm+2*i}, v{ACC+8*tm+2*i+1}")
        a(f"v_xor_b32 v6, {tm*32}, v5")
        a(f"ds_write_b128 v6, {vr(D+4*tm,4)}")
    a("v_cmp_le_u32 vcc, 4, v1")
    a("v_add_u32 v10, 16, v1")
    a("v_subrev_u32 v11, 4, v1")
    a("v_cndmask_b32 v10, v10, v11, vcc")
    a(f"v_mov_b32 v12, {4*RINGW}")
    a("v_cndmask_b32 v11, 0, v12, vcc")
    a("v_add_u32 v6, 12, v1")
    for nt, (j, gb) in enumerate((("v1", "0"), ("v10", "v11"), ("v6", "v12"))):
        a(f"v_and_b32 v8, 7, {j}")
        a("v_xor_b32 v8, v8, v2")
        a("v_lshlrev_b32 v8, 4, v8")
        a(f"v_lshl_add_u32 v8, {j}, 7, v8")
        a(f"v_add_u32 v{108+nt}, {gb}, v8")
        a(f"v_xor_b32 v{112+nt}, 64, v{108+nt}")
    a("v_lshlrev_b32 v5, 6, v1")
    a("v_lshl_add_u32 v5, v2, 4, v5")
    a(f"v_add_u32 v5, s{sRING}, v5")
    a(f"v_add_u32 v6, s{sRING}, v{vL16}")
    a(f"s_mov_b32 s94, {hex(LOG2E_NEG)}"); a("s_mov_b32 s95, s94")
    a("s_waitcnt lgkmcnt(0)")
    a("s_barrier")
    st(7)
    FB = [16, 48, 116]
    def rdF(nt):
        for T in range(8):
            if nt > 0 and T == 7: a("s_waitcnt lgkmcnt(14)")
            a(f"ds_read_b128 {vr(FB[nt]+4*T,4)}, v{(108 if T%2==0 else 112)+nt} offset:{(T>>1)*RINGW}")
    def mmF(nt): return [mf16(UA+8*nt+4*u, WU+8*T+4*u, FB[nt]+4*T, UA+8*nt+4*u) for T in range(8) for u in range(2)]
    T0 = 80
    def silu(nt, mm):
        o = UA + 8*nt; mm = list(mm)
        for i in range(8): a(f"v_mul_f32 v{T0+i}, s94, v{o+i}")
        for i in range(8):
            if mm: a(mm.pop(0))
            a(f"v_exp_f32 v{T0+i}, v{T0+i}")
        for i in range(8): a(f"v_add_f32 v{T0+i}, 1.0, v{T0+i}")
        for i in range(8):
            if mm: a(mm.pop(0))
            a(f"v_rcp_f32 v{T0+i}, v{T0+i}")
        for i in range(8): a(f"v_mul_f32 v{o+i}, v{o+i}, v{T0+i}")
        for i in range(4): a(f"v_cvt_pk_bf16_f32 v{88+4*nt+i}, v{o+2*i}, v{o+2*i+1}")
        a(f"ds_write_b128 v5, {vr(88+4*nt,4)} offset:{4096+nt*1024}")
        a(f"ds_read_b128 {vr(148+4*nt,4)}, v6 offset:{4096+nt*1024}")
    rdF(0); rdF(1)
    m = mmF(0)
    for T in range(8):
        a(f"s_waitcnt lgkmcnt({15-T})"); a(m[2*T]); a(m[2*T+1])
    rdF(2)
    a("s_waitcnt lgkmcnt(8)")
    silu(0, mmF(1))
    a("s_waitcnt lgkmcnt(2)")
    silu(1, mmF(2))
    a("s_waitcnt lgkmcnt(2)")
    a(f"buffer_store_dwordx4 v[148:151], v104, {sr(sOUT,4)}, s10 offen")
    st(8)
    silu(2, [])
    a("s_waitcnt lgkmcnt(2)")
    a(f"buffer_store_dwordx4 v[152:155], v105, {sr(sOUT,4)}, s10 offen")
    a("s_waitcnt lgkmcnt(0)")
    a(f"buffer_store_dwordx4 v[156:159], v106, {sr(sOUT,4)}, s10 offen")
    if dbg:
        st(9)
        a("s_waitcnt vmcnt(0)")
        st(10)
        a("s_memtime s[98:99]\ns_waitcnt lgkmcnt(0)\ns_sub_u32 s82, s98, s100")
        a(f"s_mov_b32 s83, s{sNB}\ns_mov_b32 s71, s70")
        for i in range(16): a(f"v_mov_b32 v{16+i}, s{71+i if i < 15 else 70}")
        a(f"s_lshl_b32 s16, s2, 3\ns_add_u32 s16, s16, s{sW}\ns_lshl_b32 s16, s16, 6\ns_add_u32 s16, s16, {WS_DBG}")
        a("v_mov_b32 v3, 0")
        for i in range(4): a(f"buffer_store_dwordx4 {vr(16+4*i,4)}, v3, {sr(sWS,4)}, s16 offen offset:{16*i}")
    a("K_end:")
    a("s_endpgm")
    hdr = open("standalone__mpnn_edge_mlp__graph.s.ref").read().split("; Override launch")[0]
    s = hdr + f"; @launch grid=(256,1,1) block=(512,1,1) lds={LDS}\n"
    s += f'.amdgcn_target "amdgcn-amd-amdhsa--gfx950"\n.text\n.globl {NAME}\n.p2align 8\n.type {NAME},@function\n' + a.text()
    s += '.section .rodata,"a"\n.p2align 6\n' + desc(NAME, NV)
    return s
if __name__ == "__main__":
    out = [x for x in sys.argv[1:] if not x.startswith("--")][0]
    open(out, "w").write(gen("--dbg" in sys.argv))
```

```python
import os, sys
from common import *
from loop import *
from front import *
X = os.environ.get('X', '').split(',')
NAME = "standalone__mpnn_edge_mlp__graph_kernel"
OOB = 0x7ff00000
sFIRST = 13
def gen(dbg=False):
    a = Asm()
    def st(n):
        if dbg:
            a(f"s_memrealtime s[98:99]\ns_waitcnt lgkmcnt(0)\ns_mov_b32 s{71+n}, s98")
    a(NAME + ":")
    gen_front(a, lambda n: st(n + 12) if n < 3 else None, dbg)
    sg = dict(RING=sRING, P=sP, EAT=sEAT, C0=sC0, T=sT, B=sB, NB=sNB, PN=NBYTES + WS_P, EN=E * 32, SC=" sc1" if "nosc" not in X else "")
    L = Loop(a, sg, ("prio",) if "noprio" not in X else ())
    RC = D
    a(f"s_lshl_b32 s11, s{sWC}, 7")
    for t in range(2):
        for i in range(2): a(f"s_add_u32 s{sC0+2*t+i}, s11, {WS_P + 64*t - t*2048 - i*1024}")
    a(f"s_lshl_b32 s{sGB}, s{sG}, 8")
    a(f"s_add_u32 s{sGB}, s{sGB}, s2")
    a(f"s_lshl_b32 s{sCELL}, s{sGB}, 12")
    a(f"s_add_u32 s{sCELL}, s{sCELL}, {WS_CELL}")
    a(f"v_lshlrev_b32 v52, 3, v{vH}")
    a(f"v_sub_u32 v52, v{vJ}, v52")
    a("v_and_b32 v53, 1, v52")
    a("v_lshlrev_b32 v53, 4, v53")
    a("v_mov_b32 v54, 0x3f80")
    a("v_lshlrev_b32 v53, v53, v54")
    a("v_ashrrev_i32 v52, 1, v52")
    for m in range(2):
        for dw in range(4): a(f"v_cmp_eq_u32 s[{62+2*dw}:{63+2*dw}], {8*m+dw}, v52")
        for dw in range(4): a(f"v_cndmask_b32 v{ID+4*m+dw}, 0, v53, s[{62+2*dw}:{63+2*dw}]")
    a(f"v_bfe_u32 v52, v{vLANE}, 2, 2")
    a(f"v_xor_b32 v52, v52, v{vH}")
    a("v_lshlrev_b32 v52, 4, v52")
    a(f"v_lshl_add_u32 v52, v{vJ}, 6, v52")
    a(f"v_add_u32 v{aP0}, s{sRING}, v52")
    a(f"v_xor_b32 v{aP1}, 32, v{aP0}")
    a(f"v_bfe_u32 v52, v{vLANE}, 3, 1")
    a(f"v_xor_b32 v52, v52, v{vH}")
    a("v_lshlrev_b32 v52, 4, v52")
    a(f"v_lshl_add_u32 v52, v{vJ}, 5, v52")
    a(f"v_add_u32 v{aE}, s{sRING}, v52")
    a(f"s_mul_i32 s{sSB}, s{sG}, {NBLK*BS}")
    a(f"s_add_u32 s{sSB}, s{sSB}, {STR}")
    a(f"s_mov_b32 s{sWIN}, 0")
    a(f"s_mov_b32 s{sSUB}, -1")
    a(f"s_mov_b32 s{sFIRST}, 1")
    a("K_round:")
    for i in range(4): a(f"v_mov_b32 v{56+i}, 0")
    a(f"s_mul_i32 s{sT}, s{sW}, {BS}")
    a(f"s_add_u32 s{sT}, s{sT}, {STR}")
    a(f"v_add_u32 v52, s{sT}, v{vL16}")
    a(f"v_lshl_add_u32 v53, v{vLANE}, 3, s{sT}")
    for i in range(3):
        a(f"ds_write_b128 v52, v[56:59] offset:{i*8*BS}")
        a(f"ds_write_b64 v53, v[56:57] offset:{i*8*BS+1024}")
    a(f"s_cmp_ge_u32 s{sW}, 2")
    a("s_cbranch_scc1 K_z1")
    a(f"ds_write_b128 v52, v[56:59] offset:{24*BS}")
    a(f"ds_write_b64 v53, v[56:57] offset:{24*BS+1024}")
    a("K_z1:")
    a(f"v_add_u32 v{aA}, s{sSB}, v{vL16}")
    a(f"v_lshl_add_u32 v{aL}, v{vLANE}, 2, s{sSB}")
    a(f"v_bfe_u32 v52, v{vLANE}, 4, 1")
    a(f"v_bfe_u32 v53, v{vLANE}, 1, 1")
    a("v_lshl_add_u32 v52, v52, 1, v53")
    a("v_lshlrev_b32 v52, 9, v52")
    a(f"v_bfe_u32 v53, v{vLANE}, 2, 2")
    a(f"v_lshl_add_u32 v53, v{vH}, 2, v53")
    a("v_lshl_add_u32 v52, v53, 4, v52")
    a(f"v_and_b32 v53, 1, v{vLANE}")
    a("v_lshl_add_u32 v52, v53, 3, v52")
    a(f"v_add_u32 v{aS}, s{sSB}, v52")
    a(f"s_cmp_eq_u32 s{sFIRST}, 0")
    a("s_cbranch_scc1 K_slowload")
    a(f"s_cmp_lg_u32 s{sW}, 0"); a("s_cbranch_scc1 K_pa1")
    a(f"s_mov_b32 s11, {SPIN}")
    a("K_pa:")
    a("s_waitcnt vmcnt(0)")
    a("v_cmp_ne_u32 vcc, 1, v42")
    a("s_cbranch_vccz K_pa1")
    a(f"buffer_load_dword v42, v43, {sr(sWS,4)}, s12 offen sc0 sc1")
    a("s_sub_u32 s11, s11, 1"); a("s_cbranch_scc0 K_pa")
    a("K_pa1:")
    a("s_waitcnt lgkmcnt(0)")
    a("s_barrier")
    st(1)
    a(f"buffer_load_dwordx4 {vr(RC,4)}, v{vT16}, {sr(sWS,4)}, s{sCELL} offen sc1")
    a(f"s_lshl_b32 s11, s{sW}, 5")
    a(f"v_add_u32 v43, s11, v{vJ}")
    a(f"v_min_u32 v43, {NPW-1}, v43")
    a("v_lshlrev_b32 v43, 7, v43")
    a(f"s_mov_b32 s12, {WS_FLAG}")
    a(f"buffer_load_dword v42, v43, {sr(sWS,4)}, s12 offen sc0 sc1")
    a(f"s_lshl_b32 s11, s{sWC}, 11")
    a(f"s_add_u32 s11, s11, {WS_W3}")
    for t in range(2): a(f"buffer_load_dwordx4 {vr(W3+4*t,4)}, v{vL16}, {sr(sWS,4)}, s11 offen offset:{t*1024} sc1")
    a(f"s_lshl_b32 s10, s{sW}, 14")
    def wu(base):
        for f in range(16):
            if f % 4 == 0: a(f"s_add_u32 s11, s10, {base + f*1024}")
            a(f"buffer_load_dwordx4 {vr(WU+4*f,4)}, v{vL16}, {sr(sWS,4)}, s11 offen offset:{(f%4)*1024} sc1")
    wu(WS_WU1)
    a(f"s_mul_i32 s11, s{sWC}, {2*RINGW}")
    a(f"s_lshl_b32 s{sT}, s{sG}, 11")
    a(f"s_add_u32 s11, s11, s{sT}")
    a(f"v_add_u32 v52, s11, v{vL16}")
    for t in range(2):
        for m in range(2): a(f"ds_read_b128 {vr(Q+8*t+4*m,4)}, v52 offset:{t*RINGW+m*1024}")
    a("v_bfe_u32 v55, v0, 3, 5")
    a(f"v_mul_u32_u24 v55, {CHE*32}, v55")
    a("s_waitcnt vmcnt(19)")
    a("K_havrec:")
    st(2)
    for k in range(4): a(f"v_cmp_gt_u32 s[{62+2*k}:{63+2*k}], -2, v{RC+k}")
    a(f"v_cmp_eq_u32 vcc, -2, v{RC}")
    a("s_bcnt1_i32_b64 s86, s[62:63]")
    a("s_bcnt1_i32_b64 s87, s[64:65]")
    a("s_bcnt1_i32_b64 s88, s[66:67]")
    a("s_bcnt1_i32_b64 s89, s[68:69]")
    a("s_add_u32 s87, s87, s86")
    a("s_add_u32 s88, s88, s87")
    a("s_add_u32 s89, s89, s88")
    a("v_mov_b32 v64, s89")
    a("v_mov_b32 v65, vcc_lo")
    a("v_mov_b32 v66, vcc_hi")
    a(f"s_lshl_b32 s{sT}, s{sW}, 4")
    a(f"s_add_u32 s{sT}, s{sT}, {MISC}")
    a(f"v_mov_b32 v68, s{sT}")
    a("ds_write_b96 v68, v[64:66]")
    a(f"v_and_b32 v68, 7, v{vLANE}")
    a("v_lshlrev_b32 v68, 4, v68")
    a(f"v_add_u32 v68, {MISC}, v68")
    a("s_waitcnt lgkmcnt(0)")
    a("s_barrier")
    a("ds_read_b96 v[64:66], v68")
    for k in range(4):
        a(f"v_mbcnt_lo_u32_b32 v{60+k}, s{62+2*k}, 0")
        a(f"v_mbcnt_hi_u32_b32 v{60+k}, s{63+2*k}, v{60+k}")
    a("s_waitcnt lgkmcnt(0)")
    for w in range(8): a(f"v_readlane_b32 s{90+w}, v64, {w}")
    a("v_or_b32 v65, v65, v66")
    a("v_cmp_ne_u32 vcc, 0, v65")
    a("s_add_u32 s91, s91, s90"); a("s_add_u32 s92, s92, s91"); a("s_add_u32 s93, s93, s92")
    a("s_add_u32 s95, s95, s94"); a("s_add_u32 s96, s96, s95"); a("s_add_u32 s97, s97, s96")
    a(f"s_max_u32 s{sNWIN}, s93, s97")
    a(f"s_cmp_eq_u32 s{sG}, 0")
    a("s_cselect_b32 s90, s90, s94"); a("s_cselect_b32 s91, s91, s95"); a("s_cselect_b32 s92, s92, s96"); a("s_cselect_b32 s93, s93, s97")
    a(f"s_cmp_eq_u32 s{sWC}, 1"); a("s_cselect_b32 s94, s90, 0")
    a(f"s_cmp_eq_u32 s{sWC}, 2"); a("s_cselect_b32 s94, s91, s94")
    a(f"s_cmp_eq_u32 s{sWC}, 3"); a("s_cselect_b32 s94, s92, s94")
    a(f"s_sub_u32 s94, s94, s{sWIN}")
    a(f"s_sub_i32 s{sCNT}, s93, s{sWIN}")
    a(f"s_max_i32 s{sCNT}, s{sCNT}, 0")
    a(f"s_min_i32 s{sCNT}, s{sCNT}, {CAP}")
    a(f"s_add_u32 s{sNB}, s{sCNT}, 31")
    a(f"s_lshr_b32 s{sNB}, s{sNB}, 5")
    a(f"s_cmp_eq_u32 s{sFIRST}, 0")
    a("s_cbranch_scc1 K_nomark")
    a(f"s_mov_b32 s{sM0}, 0"); a(f"s_mov_b32 s{sM1}, 0")
    a("s_cbranch_vccz K_nomark")
    a(f"v_lshrrev_b32 v52, 3, v{vLANE}")
    a("v_lshlrev_b32 v52, 4, v52")
    a(f"v_and_b32 v53, 7, v{vLANE}")
    a("v_add_u32 v52, v52, v53")
    a(f"v_add_u32 v52, {MISC+4}, v52")
    a("ds_read_u8 v52, v52")
    a("s_waitcnt lgkmcnt(0)")
    a(f"v_cmp_ne_u32 s[{sM0}:{sM1}], 0, v52")
    a("K_nomark:")
    a("s_add_u32 s95, s94, s86"); a("s_add_u32 s96, s94, s87"); a("s_add_u32 s97, s94, s88")
    a(f"s_movk_i32 s93, {CAP}")
    a("v_mov_b32 v54, 0x3f80")
    for k in range(4):
        a(f"v_add_u32 v{60+k}, s{94+k}, v{60+k}")
        a(f"v_cmp_gt_u32 vcc, s93, v{60+k}")
        a(f"s_and_b64 exec, vcc, s[{62+2*k}:{63+2*k}]")
        a(f"s_cbranch_execz K_x{k}")
        a(f"v_lshrrev_b32 v64, 5, v{60+k}")
        a(f"v_mul_u32_u24 v64, {BS}, v64")
        a(f"v_and_b32 v65, 31, v{60+k}")
        a(f"v_add_u32 v64, s{sSB}, v64")
        a(f"v_lshl_add_u32 v66, v65, 4, v64")
        a(f"v_lshl_add_u32 v67, v65, 3, v64")
        a(f"v_and_b32 v72, 0x3fff, v{RC+k}")
        a(f"v_bfe_u32 v69, v65, 2, 2")
        a(f"v_lshlrev_b32 v69, 4, v69")
        a(f"v_lshl_add_u32 v72, v72, 9, v69")
        a(f"v_xor_b32 v73, 16, v72")
        a(f"v_xor_b32 v74, 32, v72")
        a(f"v_xor_b32 v75, 48, v72")
        a(f"ds_write_b128 v66, v[72:75] offset:1536")
        a(f"v_lshrrev_b32 v70, 19, v{RC+k}")
        a(f"v_lshl_add_u32 v70, v70, 5, v55")
        a(f"v_bfe_u32 v69, v65, 3, 1")
        a(f"v_lshl_add_u32 v70, v69, 4, v70")
        a(f"v_xor_b32 v71, 16, v70")
        a(f"ds_write_b64 v67, v[70:71] offset:2048")
        a(f"v_bfe_u32 v68, v{RC+k}, 17, 2")
        a(f"v_lshl_add_u32 v68, v68, 9, v66")
        a(f"v_bfe_u32 v69, v{RC+k}, 14, 3")
        a(f"v_lshl_add_u32 v68, v69, 1, v68")
        a(f"ds_write_b16 v68, v54")
        a(f"K_x{k}:")
        a("s_mov_b64 exec, -1")
    a(f"s_cmp_lg_u32 s{sWC}, 3")
    a("s_cbranch_scc1 K_nopad")
    a(f"s_and_b32 s{sT}, s{sCNT}, 31")
    a("s_cbranch_scc0 K_nopad")
    a(f"s_lshr_b32 s94, s{sCNT}, 5")
    a(f"s_mul_i32 s94, s94, {BS}")
    a(f"s_add_u32 s94, s94, s{sSB}")
    a(f"v_lshl_add_u32 v66, v{vJ}, 4, s94")
    a(f"v_lshl_add_u32 v67, v{vJ}, 3, s94")
    for i in range(4): a(f"v_mov_b32 v{72+i}, {hex(OOB)}")
    a(f"v_cmp_le_u32 vcc, s{sT}, v{vJ}")
    a("s_mov_b64 exec, vcc")
    a("ds_write_b64 v67, v[72:73] offset:2048")
    a("ds_write_b128 v66, v[72:75] offset:1536")
    a("s_mov_b64 exec, -1")
    a("K_nopad:")
    st(3)
    a(f"s_cmp_eq_u32 s{sFIRST}, 0")
    a("s_cbranch_scc1 K_pb1")
    a("s_waitcnt vmcnt(18)")
    a(f"s_mov_b32 s11, {SPIN}")
    a("K_pb:")
    a("v_cmp_ne_u32 vcc, 1, v42")
    a("s_cbranch_vccz K_pb1")
    a(f"buffer_load_dword v42, v43, {sr(sWS,4)}, s12 offen sc0 sc1")
    a("s_waitcnt vmcnt(0)")
    a("s_sub_u32 s11, s11, 1"); a("s_cbranch_scc0 K_pb")
    a("K_pb1:")
    a("s_waitcnt lgkmcnt(0)")
    a("s_barrier")
    st(4)
    for x in L.rdL(0) + L.rdL(BS, 64): a(x)
    def dma(slot, lv, nb):
        a(f"s_cmp_gt_u32 s{sNB}, {nb}")
        a(f"s_cselect_b32 s{sP+2}, {sg['PN']}, 0")
        a(f"s_cselect_b32 s{sEAT+2}, {sg['EN']}, 0")
        for x, y in L.dma(slot, lv):
            if x: a(x); a("s_nop 0")
            a(y)
    a("s_waitcnt lgkmcnt(2)")
    dma(0, L4V, 0)
    a("s_waitcnt lgkmcnt(0)")
    dma(1, 64, 1)
    a(f"s_cmp_eq_u32 s{sFIRST}, 0")
    a("s_cbranch_scc1 K_nou")
    a(f"v_and_b32 v44, 15, v{vLANE}")
    a(f"v_lshrrev_b32 v45, 4, v{vLANE}")
    a("v_min_u32 v46, 7, v44")
    for r, n, base in ((40, 44, XO), (41, 46, XO + 32*512)):
        a(f"v_xor_b32 v47, v45, v{n}")
        a("v_lshlrev_b32 v47, 4, v47")
        a(f"v_lshl_add_u32 v47, v{n}, 9, v47")
        a(f"v_add_u32 v{r}, {base}, v47")
    UF = 48
    def ureads(T):
        b = T % 4
        a(f"v_xor_b32 v44, {T*64}, v40"); a(f"v_xor_b32 v45, {T*64}, v41")
        a(f"ds_read_b128 {vr(UF+12*b,4)}, v44"); a(f"ds_read_b128 {vr(UF+12*b+4,4)}, v44 offset:8192"); a(f"ds_read_b128 {vr(UF+12*b+8,4)}, v45")
    for T in range(3): ureads(T)
    for T in range(8):
        if T + 3 < 8: ureads(T + 3)
        a(f"s_waitcnt vmcnt({10 + 14 - 2*T}) lgkmcnt({3*min(3, 7-T)})")
        for nt in range(3):
            for u in range(2):
                o = UA + 8*nt + 4*u
                a(mf16(o, WU+8*T+4*u, UF+12*(T%4)+4*nt, "0" if T == 0 else o))
    wu(WS_WU2)
    for i in range(32): a(f"v_mov_b32 v{ACC+i}, 0")
    a("s_waitcnt vmcnt(21)")
    a("s_branch K_go")
    a("K_nou:")
    a("s_waitcnt vmcnt(5)")
    a("K_go:")
    st(5)
    a(f"s_cmp_eq_u32 s{sNB}, 0")
    a("s_cbranch_scc1 K_rend")
    for x in L.rdO(0) + [L.rdE(0)] + L.rdP(0, 0): a(x)
    for i in range(8): a(f"v_mov_b32 v{MSG+i}, 0")
    for i in range(8): a(f"v_mov_b32 v{S+i}, 0")
    a(f"s_mov_b32 s{sB}, 0")
    if "noprio" not in X: a("s_setprio 1")
    a("s_waitcnt lgkmcnt(0)")
    for x in L.M1(0): a(x)
    a("s_nop 7"); a("s_nop 3")
    a("K_loop:")
    L.block(0, PL1)
    a("s_cbranch_scc1 K_lend")
    L.block(1, PL1)
    a("s_cbranch_scc0 K_loop")
    a("K_lend:")
    a("s_nop 1")
    for x in L.M2(1): a(x)
    a("K_rend:")
    st(6)
    a(f"s_mov_b32 s{sFIRST}, 0")
    a(f"s_add_u32 s{sWIN}, s{sWIN}, {CAP}")
    a(f"s_cmp_lt_u32 s{sWIN}, s{sNWIN}")
    a("s_cbranch_scc1 K_again")
    a(f"s_or_b32 s{sT}, s{sM0}, s{sM1}")
    a("s_cbranch_scc0 K_final")
    a(f"s_mov_b32 s{sWIN}, 0")
    a(f"s_add_u32 s{sSUB}, s{sSUB}, 1")
    a(f"s_cmp_lt_u32 s{sSUB}, 5")
    a("s_cbranch_scc1 K_samech")
    a(f"s_bitset0_b32 s{sM0}, s{sCH}")
    a(f"s_bitset0_b32 s{sM1}, s{sCH}")
    a(f"s_mov_b32 s{sSUB}, 0")
    a(f"s_or_b32 s{sT}, s{sM0}, s{sM1}")
    a("s_cbranch_scc0 K_final")
    a("K_samech:")
    a(f"s_ff1_i32_b32 s{sCH}, s{sT}")
    a("K_again:")
    a("s_nop 7"); a("s_nop 7")
    a("s_waitcnt vmcnt(0) lgkmcnt(0)")
    a("s_barrier")
    a("s_branch K_round")
    a("K_slowload:")
    a(f"s_cmp_lg_u32 s{sSUB}, -1")
    a("s_cbranch_scc1 K_raw")
    a(f"buffer_load_dwordx4 {vr(RC,4)}, v{vT16}, {sr(sWS,4)}, s{sCELL} offen sc1")
    a("v_bfe_u32 v55, v0, 3, 5")
    a(f"v_mul_u32_u24 v55, {CHE*32}, v55")
    a("s_waitcnt vmcnt(0)")
    a("s_branch K_havrec")
    a("K_raw:")
    a(f"s_mul_i32 s{sT}, s{sCH}, {CHE*4}")
    a(f"s_lshl_b32 s94, s{sSUB}, 12")
    a(f"s_add_u32 s{sT}, s{sT}, s94")
    a(f"buffer_load_dwordx4 {vr(RC,4)}, v{vT16}, {sr(sSRC,4)}, s{sT} offen")
    a(f"buffer_load_dwordx4 v[64:67], v{vT16}, {sr(sDST,4)}, s{sT} offen")
    a(f"s_mul_i32 s95, s{sCH}, {CHE*32}")
    a("v_mov_b32 v55, s95")
    a(f"s_cmp_eq_u32 s{sG}, 0")
    a(f"s_cselect_b32 s95, s{sM0}, s{sM1}")
    a(f"s_bitcmp1_b32 s95, s{sCH}")
    a(f"s_cselect_b32 s95, s{sGB}, -1")
    a(f"v_add_u32 v68, s94, v{vT16}")
    a("v_lshrrev_b32 v68, 2, v68")
    a(f"s_movk_i32 s96, {CHE}")
    a("v_cmp_gt_u32 s[62:63], s96, v68")
    a("s_waitcnt vmcnt(0)")
    for k in range(4):
        a(f"v_and_b32 v69, 0x1ff, v{64+k}")
        a("v_cmp_eq_u32 vcc, s95, v69")
        a(f"v_lshrrev_b32 v69, 9, v{64+k}")
        a(f"v_lshl_or_b32 v{RC+k}, v69, 14, v{RC+k}")
        a(f"v_add_u32 v69, {k}, v68")
        a(f"v_lshl_or_b32 v{RC+k}, v69, 19, v{RC+k}")
        a("s_and_b64 vcc, vcc, s[62:63]")
        a(f"v_cndmask_b32 v{RC+k}, -1, v{RC+k}, vcc")
    a("s_branch K_havrec")
    a("K_final:")
    a("s_lshl_b32 s10, s2, 9")
    a(f"s_lshl_b32 s94, s{sW}, 6")
    a("s_add_u32 s10, s10, s94")
    a(f"v_and_b32 v1, 15, v{vLANE}")
    a(f"v_lshrrev_b32 v2, 4, v{vLANE}")
    a(f"v_lshrrev_b32 v3, 2, v{vLANE}")
    a(f"v_and_b32 v4, 3, v{vLANE}")
    a("v_lshlrev_b32 v5, 18, v3")
    a("v_lshl_add_u32 v104, v4, 4, v5")
    a("v_cmp_le_u32 vcc, 4, v3")
    a(f"v_add_u32 v105, {hex(16<<18)}, v104")
    a(f"v_subrev_u32 v5, {hex((4<<18) - (256<<9))}, v104")
    a("v_cndmask_b32 v105, v105, v5, vcc")
    a(f"v_add_u32 v106, {hex((12<<18) + (256<<9))}, v104")
    a(f"v_and_b32 v5, 7, v{vJ}")
    a(f"v_xor_b32 v5, v5, v{vH}")
    a("v_lshlrev_b32 v5, 4, v5")
    a(f"v_lshl_add_u32 v5, v{vJ}, 7, v5")
    a(f"v_add_u32 v5, s{sRING}, v5")
    a(f"s_mov_b32 s94, {hex(LN2_NEG)}"); a("s_mov_b32 s95, s94")
    a("s_waitcnt vmcnt(0)")
    for tm in range(4):
        for i in range(0, 8, 2): a(f"v_pk_mul_f32 {vr(ACC+8*tm+i,2)}, {vr(ACC+8*tm+i,2)}, s[94:95]")
        for i in range(4): a(f"v_cvt_pk_bf16_f32 v{D+4*tm+i}, v{ACC+8*tm+2*i}, v{ACC+8*tm+2*i+1}")
        a(f"v_xor_b32 v6, {tm*32}, v5")
        a(f"ds_write_b128 v6, {vr(D+4*tm,4)}")
    a("v_cmp_le_u32 vcc, 4, v1")
    a("v_add_u32 v10, 16, v1")
    a("v_subrev_u32 v11, 4, v1")
    a("v_cndmask_b32 v10, v10, v11, vcc")
    a(f"v_mov_b32 v12, {4*RINGW}")
    a("v_cndmask_b32 v11, 0, v12, vcc")
    a("v_add_u32 v6, 12, v1")
    for nt, (j, gb) in enumerate((("v1", "0"), ("v10", "v11"), ("v6", "v12"))):
        a(f"v_and_b32 v8, 7, {j}")
        a("v_xor_b32 v8, v8, v2")
        a("v_lshlrev_b32 v8, 4, v8")
        a(f"v_lshl_add_u32 v8, {j}, 7, v8")
        a(f"v_add_u32 v{108+nt}, {gb}, v8")
        a(f"v_xor_b32 v{112+nt}, 64, v{108+nt}")
    a("v_lshlrev_b32 v5, 6, v1")
    a("v_lshl_add_u32 v5, v2, 4, v5")
    a(f"v_add_u32 v5, s{sRING}, v5")
    a(f"v_add_u32 v6, s{sRING}, v{vL16}")
    a(f"s_mov_b32 s94, {hex(LOG2E_NEG)}"); a("s_mov_b32 s95, s94")
    a("s_waitcnt lgkmcnt(0)")
    a("s_barrier")
    st(7)
    FB = [16, 48, 116]
    def rdF(nt):
        for T in range(8):
            if nt > 0 and T == 7: a("s_waitcnt lgkmcnt(14)")
            a(f"ds_read_b128 {vr(FB[nt]+4*T,4)}, v{(108 if T%2==0 else 112)+nt} offset:{(T>>1)*RINGW}")
    def mmF(nt): return [mf16(UA+8*nt+4*u, WU+8*T+4*u, FB[nt]+4*T, UA+8*nt+4*u) for T in range(8) for u in range(2)]
    T0 = 80
    def silu(nt, mm):
        o = UA + 8*nt; mm = list(mm)
        for i in range(8): a(f"v_mul_f32 v{T0+i}, s94, v{o+i}")
        for i in range(8):
            if mm: a(mm.pop(0))
            a(f"v_exp_f32 v{T0+i}, v{T0+i}")
        for i in range(8): a(f"v_add_f32 v{T0+i}, 1.0, v{T0+i}")
        for i in range(8):
            if mm: a(mm.pop(0))
            a(f"v_rcp_f32 v{T0+i}, v{T0+i}")
        for i in range(8): a(f"v_mul_f32 v{o+i}, v{o+i}, v{T0+i}")
        for i in range(4): a(f"v_cvt_pk_bf16_f32 v{88+4*nt+i}, v{o+2*i}, v{o+2*i+1}")
        a(f"ds_write_b128 v5, {vr(88+4*nt,4)} offset:{4096+nt*1024}")
        a(f"ds_read_b128 {vr(148+4*nt,4)}, v6 offset:{4096+nt*1024}")
    rdF(0); rdF(1)
    m = mmF(0)
    for T in range(8):
        a(f"s_waitcnt lgkmcnt({15-T})"); a(m[2*T]); a(m[2*T+1])
    rdF(2)
    a("s_waitcnt lgkmcnt(8)")
    silu(0, mmF(1))
    a("s_waitcnt lgkmcnt(2)")
    silu(1, mmF(2))
    a("s_waitcnt lgkmcnt(2)")
    a(f"buffer_store_dwordx4 v[148:151], v104, {sr(sOUT,4)}, s10 offen")
    st(8)
    silu(2, [])
    a("s_waitcnt lgkmcnt(2)")
    a(f"buffer_store_dwordx4 v[152:155], v105, {sr(sOUT,4)}, s10 offen")
    a("s_waitcnt lgkmcnt(0)")
    a(f"buffer_store_dwordx4 v[156:159], v106, {sr(sOUT,4)}, s10 offen")
    if dbg:
        st(9)
        a("s_waitcnt vmcnt(0)")
        st(10)
        a("s_memtime s[98:99]\ns_waitcnt lgkmcnt(0)\ns_sub_u32 s82, s98, s100")
        a(f"s_mov_b32 s83, s{sNB}\ns_mov_b32 s71, s70")
        for i in range(16): a(f"v_mov_b32 v{16+i}, s{71+i if i < 15 else 70}")
        a(f"s_lshl_b32 s16, s2, 3\ns_add_u32 s16, s16, s{sW}\ns_lshl_b32 s16, s16, 6\ns_add_u32 s16, s16, {WS_DBG}")
        a("v_mov_b32 v3, 0")
        for i in range(4): a(f"buffer_store_dwordx4 {vr(16+4*i,4)}, v3, {sr(sWS,4)}, s16 offen offset:{16*i}")
        if "spin" in X:
            a("K_spin:\ns_memrealtime s[98:99]\ns_waitcnt lgkmcnt(0)\ns_sub_u32 s98, s98, s70\ns_cmp_lt_u32 s98, 6000\ns_cbranch_scc1 K_spin")
        if "dbg2" in X:
            a("s_load_dwordx2 s[20:21], s[0:1], 56\ns_waitcnt lgkmcnt(0)")
            srd(a, 24, 20, 0, 256)
            a("v_not_b32 v31, v31\ns_mov_b64 exec, 1")
            for i in range(1, 16): a(f"buffer_atomic_umax v{16+i}, v3, s[24:27], 0 offen offset:{4*i} sc1")
    a("K_end:")
    a("s_endpgm")
    hdr = open("standalone__mpnn_edge_mlp__graph.s.ref").read().split("; Override launch")[0]
    s = hdr + f"; @launch grid=(256,1,1) block=(512,1,1) lds={LDS}\n"
    s += f'.amdgcn_target "amdgcn-amd-amdhsa--gfx950"\n.text\n.globl {NAME}\n.p2align 8\n.type {NAME},@function\n' + a.text()
    s += '.section .rodata,"a"\n.p2align 6\n' + desc(NAME, NV)
    return s
if __name__ == "__main__":
    out = [x for x in sys.argv[1:] if not x.startswith("--")][0]
    open(out, "w").write(gen("--dbg" in sys.argv))
```

```python
import os, sys
from common import *
from loop import *
from front import *
X = os.environ.get('X', '').split(',')
NAME = "standalone__mpnn_edge_mlp__graph_kernel"
OOB = 0x7ff00000
sFIRST = 13
OSC = ' sc0 sc1' if 'osc' in X else ' nt' if 'ont' in X else ' sc0 sc1 nt' if 'oall' in X else ''
def gen(dbg=False):
    a = Asm()
    def st(n):
        if dbg:
            a(f"s_memrealtime s[98:99]\ns_waitcnt lgkmcnt(0)\ns_mov_b32 s{71+n}, s98")
    a(NAME + ":")
    gen_front(a, lambda n: st(n + 12) if n < 3 else None, dbg)
    sg = dict(RING=sRING, P=sP, EAT=sEAT, C0=sC0, T=sT, B=sB, NB=sNB, PN=NBYTES + WS_P, EN=E * 32, SC=" sc1" if "nosc" not in X else "")
    L = Loop(a, sg, ("prio",) if "noprio" not in X else ())
    RC = D
    a(f"s_lshl_b32 s11, s{sWC}, 7")
    for t in range(2):
        for i in range(2): a(f"s_add_u32 s{sC0+2*t+i}, s11, {WS_P + 64*t - t*2048 - i*1024}")
    a(f"s_lshl_b32 s{sGB}, s{sG}, 8")
    a(f"s_add_u32 s{sGB}, s{sGB}, s2")
    a(f"s_lshl_b32 s{sCELL}, s{sGB}, 12")
    a(f"s_add_u32 s{sCELL}, s{sCELL}, {WS_CELL}")
    a(f"v_lshlrev_b32 v52, 3, v{vH}")
    a(f"v_sub_u32 v52, v{vJ}, v52")
    a("v_and_b32 v53, 1, v52")
    a("v_lshlrev_b32 v53, 4, v53")
    a("v_mov_b32 v54, 0x3f80")
    a("v_lshlrev_b32 v53, v53, v54")
    a("v_ashrrev_i32 v52, 1, v52")
    for m in range(2):
        for dw in range(4): a(f"v_cmp_eq_u32 s[{62+2*dw}:{63+2*dw}], {8*m+dw}, v52")
        for dw in range(4): a(f"v_cndmask_b32 v{ID+4*m+dw}, 0, v53, s[{62+2*dw}:{63+2*dw}]")
    a(f"v_bfe_u32 v52, v{vLANE}, 2, 2")
    a(f"v_xor_b32 v52, v52, v{vH}")
    a("v_lshlrev_b32 v52, 4, v52")
    a(f"v_lshl_add_u32 v52, v{vJ}, 6, v52")
    a(f"v_add_u32 v{aP0}, s{sRING}, v52")
    a(f"v_xor_b32 v{aP1}, 32, v{aP0}")
    a(f"v_bfe_u32 v52, v{vLANE}, 3, 1")
    a(f"v_xor_b32 v52, v52, v{vH}")
    a("v_lshlrev_b32 v52, 4, v52")
    a(f"v_lshl_add_u32 v52, v{vJ}, 5, v52")
    a(f"v_add_u32 v{aE}, s{sRING}, v52")
    a(f"s_mul_i32 s{sSB}, s{sG}, {NBLK*BS}")
    a(f"s_add_u32 s{sSB}, s{sSB}, {STR}")
    a(f"s_mov_b32 s{sWIN}, 0")
    a(f"s_mov_b32 s{sSUB}, -1")
    a(f"s_mov_b32 s{sFIRST}, 1")
    a("K_round:")
    for i in range(4): a(f"v_mov_b32 v{56+i}, 0")
    a(f"s_mul_i32 s{sT}, s{sW}, {BS}")
    a(f"s_add_u32 s{sT}, s{sT}, {STR}")
    a(f"v_add_u32 v52, s{sT}, v{vL16}")
    a(f"v_lshl_add_u32 v53, v{vLANE}, 3, s{sT}")
    for i in range(3):
        a(f"ds_write_b128 v52, v[56:59] offset:{i*8*BS}")
        a(f"ds_write_b64 v53, v[56:57] offset:{i*8*BS+1024}")
    a(f"s_cmp_ge_u32 s{sW}, 2")
    a("s_cbranch_scc1 K_z1")
    a(f"ds_write_b128 v52, v[56:59] offset:{24*BS}")
    a(f"ds_write_b64 v53, v[56:57] offset:{24*BS+1024}")
    a("K_z1:")
    a(f"v_add_u32 v{aA}, s{sSB}, v{vL16}")
    a(f"v_lshl_add_u32 v{aL}, v{vLANE}, 2, s{sSB}")
    a(f"v_bfe_u32 v52, v{vLANE}, 4, 1")
    a(f"v_bfe_u32 v53, v{vLANE}, 1, 1")
    a("v_lshl_add_u32 v52, v52, 1, v53")
    a("v_lshlrev_b32 v52, 9, v52")
    a(f"v_bfe_u32 v53, v{vLANE}, 2, 2")
    a(f"v_lshl_add_u32 v53, v{vH}, 2, v53")
    a("v_lshl_add_u32 v52, v53, 4, v52")
    a(f"v_and_b32 v53, 1, v{vLANE}")
    a("v_lshl_add_u32 v52, v53, 3, v52")
    a(f"v_add_u32 v{aS}, s{sSB}, v52")
    a(f"s_cmp_eq_u32 s{sFIRST}, 0")
    a("s_cbranch_scc1 K_slowload")
    a(f"s_cmp_lg_u32 s{sW}, 0"); a("s_cbranch_scc1 K_pa1")
    a(f"s_mov_b32 s11, {SPIN}")
    a("K_pa:")
    a("s_waitcnt vmcnt(0)")
    a("v_cmp_ne_u32 vcc, 1, v42")
    a("s_cbranch_vccz K_pa1")
    a(f"buffer_load_dword v42, v43, {sr(sWS,4)}, s12 offen sc0 sc1")
    a("s_sub_u32 s11, s11, 1"); a("s_cbranch_scc0 K_pa")
    a("K_pa1:")
    a("s_waitcnt lgkmcnt(0)")
    a("s_barrier")
    st(1)
    a(f"buffer_load_dwordx4 {vr(RC,4)}, v{vT16}, {sr(sWS,4)}, s{sCELL} offen sc1")
    a(f"s_lshl_b32 s11, s{sW}, 5")
    a(f"v_add_u32 v43, s11, v{vJ}")
    a(f"v_min_u32 v43, {NPW-1}, v43")
    a("v_lshlrev_b32 v43, 7, v43")
    a(f"s_mov_b32 s12, {WS_FLAG}")
    a(f"buffer_load_dword v42, v43, {sr(sWS,4)}, s12 offen sc0 sc1")
    a(f"s_lshl_b32 s11, s{sWC}, 11")
    a(f"s_add_u32 s11, s11, {WS_W3}")
    for t in range(2): a(f"buffer_load_dwordx4 {vr(W3+4*t,4)}, v{vL16}, {sr(sWS,4)}, s11 offen offset:{t*1024} sc1")
    a(f"s_lshl_b32 s10, s{sW}, 14")
    def wu(base):
        for f in range(16):
            if f % 4 == 0: a(f"s_add_u32 s11, s10, {base + f*1024}")
            a(f"buffer_load_dwordx4 {vr(WU+4*f,4)}, v{vL16}, {sr(sWS,4)}, s11 offen offset:{(f%4)*1024} sc1")
    wu(WS_WU1)
    a(f"s_mul_i32 s11, s{sWC}, {2*RINGW}")
    a(f"s_lshl_b32 s{sT}, s{sG}, 11")
    a(f"s_add_u32 s11, s11, s{sT}")
    a(f"v_add_u32 v52, s11, v{vL16}")
    for t in range(2):
        for m in range(2): a(f"ds_read_b128 {vr(Q+8*t+4*m,4)}, v52 offset:{t*RINGW+m*1024}")
    a("v_bfe_u32 v55, v0, 3, 5")
    a(f"v_mul_u32_u24 v55, {CHE*32}, v55")
    a("s_waitcnt vmcnt(19)")
    a("K_havrec:")
    st(2)
    for k in range(4): a(f"v_cmp_gt_u32 s[{62+2*k}:{63+2*k}], -2, v{RC+k}")
    a(f"v_cmp_eq_u32 vcc, -2, v{RC}")
    a("s_bcnt1_i32_b64 s86, s[62:63]")
    a("s_bcnt1_i32_b64 s87, s[64:65]")
    a("s_bcnt1_i32_b64 s88, s[66:67]")
    a("s_bcnt1_i32_b64 s89, s[68:69]")
    a("s_add_u32 s87, s87, s86")
    a("s_add_u32 s88, s88, s87")
    a("s_add_u32 s89, s89, s88")
    a("v_mov_b32 v64, s89")
    a("v_mov_b32 v65, vcc_lo")
    a("v_mov_b32 v66, vcc_hi")
    a(f"s_lshl_b32 s{sT}, s{sW}, 4")
    a(f"s_add_u32 s{sT}, s{sT}, {MISC}")
    a(f"v_mov_b32 v68, s{sT}")
    a("ds_write_b96 v68, v[64:66]")
    a(f"v_and_b32 v68, 7, v{vLANE}")
    a("v_lshlrev_b32 v68, 4, v68")
    a(f"v_add_u32 v68, {MISC}, v68")
    a("s_waitcnt lgkmcnt(0)")
    a("s_barrier")
    a("ds_read_b96 v[64:66], v68")
    for k in range(4):
        a(f"v_mbcnt_lo_u32_b32 v{60+k}, s{62+2*k}, 0")
        a(f"v_mbcnt_hi_u32_b32 v{60+k}, s{63+2*k}, v{60+k}")
    a("s_waitcnt lgkmcnt(0)")
    for w in range(8): a(f"v_readlane_b32 s{90+w}, v64, {w}")
    a("v_or_b32 v65, v65, v66")
    a("v_cmp_ne_u32 vcc, 0, v65")
    a("s_add_u32 s91, s91, s90"); a("s_add_u32 s92, s92, s91"); a("s_add_u32 s93, s93, s92")
    a("s_add_u32 s95, s95, s94"); a("s_add_u32 s96, s96, s95"); a("s_add_u32 s97, s97, s96")
    a(f"s_max_u32 s{sNWIN}, s93, s97")
    a(f"s_cmp_eq_u32 s{sG}, 0")
    a("s_cselect_b32 s90, s90, s94"); a("s_cselect_b32 s91, s91, s95"); a("s_cselect_b32 s92, s92, s96"); a("s_cselect_b32 s93, s93, s97")
    a(f"s_cmp_eq_u32 s{sWC}, 1"); a("s_cselect_b32 s94, s90, 0")
    a(f"s_cmp_eq_u32 s{sWC}, 2"); a("s_cselect_b32 s94, s91, s94")
    a(f"s_cmp_eq_u32 s{sWC}, 3"); a("s_cselect_b32 s94, s92, s94")
    a(f"s_sub_u32 s94, s94, s{sWIN}")
    a(f"s_sub_i32 s{sCNT}, s93, s{sWIN}")
    a(f"s_max_i32 s{sCNT}, s{sCNT}, 0")
    a(f"s_min_i32 s{sCNT}, s{sCNT}, {CAP}")
    a(f"s_add_u32 s{sNB}, s{sCNT}, 31")
    a(f"s_lshr_b32 s{sNB}, s{sNB}, 5")
    a(f"s_cmp_eq_u32 s{sFIRST}, 0")
    a("s_cbranch_scc1 K_nomark")
    a(f"s_mov_b32 s{sM0}, 0"); a(f"s_mov_b32 s{sM1}, 0")
    a("s_cbranch_vccz K_nomark")
    a(f"v_lshrrev_b32 v52, 3, v{vLANE}")
    a("v_lshlrev_b32 v52, 4, v52")
    a(f"v_and_b32 v53, 7, v{vLANE}")
    a("v_add_u32 v52, v52, v53")
    a(f"v_add_u32 v52, {MISC+4}, v52")
    a("ds_read_u8 v52, v52")
    a("s_waitcnt lgkmcnt(0)")
    a(f"v_cmp_ne_u32 s[{sM0}:{sM1}], 0, v52")
    a("K_nomark:")
    a("s_add_u32 s95, s94, s86"); a("s_add_u32 s96, s94, s87"); a("s_add_u32 s97, s94, s88")
    a(f"s_movk_i32 s93, {CAP}")
    a("v_mov_b32 v54, 0x3f80")
    for k in range(4):
        a(f"v_add_u32 v{60+k}, s{94+k}, v{60+k}")
        a(f"v_cmp_gt_u32 vcc, s93, v{60+k}")
        a(f"s_and_b64 exec, vcc, s[{62+2*k}:{63+2*k}]")
        a(f"s_cbranch_execz K_x{k}")
        a(f"v_lshrrev_b32 v64, 5, v{60+k}")
        a(f"v_mul_u32_u24 v64, {BS}, v64")
        a(f"v_and_b32 v65, 31, v{60+k}")
        a(f"v_add_u32 v64, s{sSB}, v64")
        a(f"v_lshl_add_u32 v66, v65, 4, v64")
        a(f"v_lshl_add_u32 v67, v65, 3, v64")
        a(f"v_and_b32 v72, 0x3fff, v{RC+k}")
        a(f"v_bfe_u32 v69, v65, 2, 2")
        a(f"v_lshlrev_b32 v69, 4, v69")
        a(f"v_lshl_add_u32 v72, v72, 9, v69")
        a(f"v_xor_b32 v73, 16, v72")
        a(f"v_xor_b32 v74, 32, v72")
        a(f"v_xor_b32 v75, 48, v72")
        a(f"ds_write_b128 v66, v[72:75] offset:1536")
        a(f"v_lshrrev_b32 v70, 19, v{RC+k}")
        a(f"v_lshl_add_u32 v70, v70, 5, v55")
        a(f"v_bfe_u32 v69, v65, 3, 1")
        a(f"v_lshl_add_u32 v70, v69, 4, v70")
        a(f"v_xor_b32 v71, 16, v70")
        a(f"ds_write_b64 v67, v[70:71] offset:2048")
        a(f"v_bfe_u32 v68, v{RC+k}, 17, 2")
        a(f"v_lshl_add_u32 v68, v68, 9, v66")
        a(f"v_bfe_u32 v69, v{RC+k}, 14, 3")
        a(f"v_lshl_add_u32 v68, v69, 1, v68")
        a(f"ds_write_b16 v68, v54")
        a(f"K_x{k}:")
        a("s_mov_b64 exec, -1")
    a(f"s_cmp_lg_u32 s{sWC}, 3")
    a("s_cbranch_scc1 K_nopad")
    a(f"s_and_b32 s{sT}, s{sCNT}, 31")
    a("s_cbranch_scc0 K_nopad")
    a(f"s_lshr_b32 s94, s{sCNT}, 5")
    a(f"s_mul_i32 s94, s94, {BS}")
    a(f"s_add_u32 s94, s94, s{sSB}")
    a(f"v_lshl_add_u32 v66, v{vJ}, 4, s94")
    a(f"v_lshl_add_u32 v67, v{vJ}, 3, s94")
    for i in range(4): a(f"v_mov_b32 v{72+i}, {hex(OOB)}")
    a(f"v_cmp_le_u32 vcc, s{sT}, v{vJ}")
    a("s_mov_b64 exec, vcc")
    a("ds_write_b64 v67, v[72:73] offset:2048")
    a("ds_write_b128 v66, v[72:75] offset:1536")
    a("s_mov_b64 exec, -1")
    a("K_nopad:")
    st(3)
    a(f"s_cmp_eq_u32 s{sFIRST}, 0")
    a("s_cbranch_scc1 K_pb1")
    a("s_waitcnt vmcnt(18)")
    a(f"s_mov_b32 s11, {SPIN}")
    a("K_pb:")
    a("v_cmp_ne_u32 vcc, 1, v42")
    a("s_cbranch_vccz K_pb1")
    a(f"buffer_load_dword v42, v43, {sr(sWS,4)}, s12 offen sc0 sc1")
    a("s_waitcnt vmcnt(0)")
    a("s_sub_u32 s11, s11, 1"); a("s_cbranch_scc0 K_pb")
    a("K_pb1:")
    a("s_waitcnt lgkmcnt(0)")
    a("s_barrier")
    st(4)
    for x in L.rdL(0) + L.rdL(BS, 64): a(x)
    def dma(slot, lv, nb):
        a(f"s_cmp_gt_u32 s{sNB}, {nb}")
        a(f"s_cselect_b32 s{sP+2}, {sg['PN']}, 0")
        a(f"s_cselect_b32 s{sEAT+2}, {sg['EN']}, 0")
        for x, y in L.dma(slot, lv):
            if x: a(x); a("s_nop 0")
            a(y)
    a("s_waitcnt lgkmcnt(2)")
    dma(0, L4V, 0)
    a("s_waitcnt lgkmcnt(0)")
    dma(1, 64, 1)
    a(f"s_cmp_eq_u32 s{sFIRST}, 0")
    a("s_cbranch_scc1 K_nou")
    a(f"v_and_b32 v44, 15, v{vLANE}")
    a(f"v_lshrrev_b32 v45, 4, v{vLANE}")
    a("v_min_u32 v46, 7, v44")
    for r, n, base in ((40, 44, XO), (41, 46, XO + 32*512)):
        a(f"v_xor_b32 v47, v45, v{n}")
        a("v_lshlrev_b32 v47, 4, v47")
        a(f"v_lshl_add_u32 v47, v{n}, 9, v47")
        a(f"v_add_u32 v{r}, {base}, v47")
    UF = 48
    def ureads(T):
        b = T % 4
        a(f"v_xor_b32 v44, {T*64}, v40"); a(f"v_xor_b32 v45, {T*64}, v41")
        a(f"ds_read_b128 {vr(UF+12*b,4)}, v44"); a(f"ds_read_b128 {vr(UF+12*b+4,4)}, v44 offset:8192"); a(f"ds_read_b128 {vr(UF+12*b+8,4)}, v45")
    for T in range(3): ureads(T)
    for T in range(8):
        if T + 3 < 8: ureads(T + 3)
        a(f"s_waitcnt vmcnt({10 + 14 - 2*T}) lgkmcnt({3*min(3, 7-T)})")
        for nt in range(3):
            for u in range(2):
                o = UA + 8*nt + 4*u
                a(mf16(o, WU+8*T+4*u, UF+12*(T%4)+4*nt, "0" if T == 0 else o))
    wu(WS_WU2)
    for i in range(32): a(f"v_mov_b32 v{ACC+i}, 0")
    a("s_waitcnt vmcnt(21)")
    a("s_branch K_go")
    a("K_nou:")
    a("s_waitcnt vmcnt(5)")
    a("K_go:")
    st(5)
    a(f"s_cmp_eq_u32 s{sNB}, 0")
    a("s_cbranch_scc1 K_rend")
    for x in L.rdO(0) + [L.rdE(0)] + L.rdP(0, 0): a(x)
    for i in range(8): a(f"v_mov_b32 v{MSG+i}, 0")
    for i in range(8): a(f"v_mov_b32 v{S+i}, 0")
    a(f"s_mov_b32 s{sB}, 0")
    if "noprio" not in X: a("s_setprio 1")
    a("s_waitcnt lgkmcnt(0)")
    for x in L.M1(0): a(x)
    a("s_nop 7"); a("s_nop 3")
    a("K_loop:")
    L.block(0, PL1)
    a("s_cbranch_scc1 K_lend")
    L.block(1, PL1)
    a("s_cbranch_scc0 K_loop")
    a("K_lend:")
    a("s_nop 1")
    for x in L.M2(1): a(x)
    a("K_rend:")
    st(6)
    a(f"s_mov_b32 s{sFIRST}, 0")
    a(f"s_add_u32 s{sWIN}, s{sWIN}, {CAP}")
    a(f"s_cmp_lt_u32 s{sWIN}, s{sNWIN}")
    a("s_cbranch_scc1 K_again")
    a(f"s_or_b32 s{sT}, s{sM0}, s{sM1}")
    a("s_cbranch_scc0 K_final")
    a(f"s_mov_b32 s{sWIN}, 0")
    a(f"s_add_u32 s{sSUB}, s{sSUB}, 1")
    a(f"s_cmp_lt_u32 s{sSUB}, 5")
    a("s_cbranch_scc1 K_samech")
    a(f"s_bitset0_b32 s{sM0}, s{sCH}")
    a(f"s_bitset0_b32 s{sM1}, s{sCH}")
    a(f"s_mov_b32 s{sSUB}, 0")
    a(f"s_or_b32 s{sT}, s{sM0}, s{sM1}")
    a("s_cbranch_scc0 K_final")
    a("K_samech:")
    a(f"s_ff1_i32_b32 s{sCH}, s{sT}")
    a("K_again:")
    a("s_nop 7"); a("s_nop 7")
    a("s_waitcnt vmcnt(0) lgkmcnt(0)")
    a("s_barrier")
    a("s_branch K_round")
    a("K_slowload:")
    a(f"s_cmp_lg_u32 s{sSUB}, -1")
    a("s_cbranch_scc1 K_raw")
    a(f"buffer_load_dwordx4 {vr(RC,4)}, v{vT16}, {sr(sWS,4)}, s{sCELL} offen sc1")
    a("v_bfe_u32 v55, v0, 3, 5")
    a(f"v_mul_u32_u24 v55, {CHE*32}, v55")
    a("s_waitcnt vmcnt(0)")
    a("s_branch K_havrec")
    a("K_raw:")
    a(f"s_mul_i32 s{sT}, s{sCH}, {CHE*4}")
    a(f"s_lshl_b32 s94, s{sSUB}, 12")
    a(f"s_add_u32 s{sT}, s{sT}, s94")
    a(f"buffer_load_dwordx4 {vr(RC,4)}, v{vT16}, {sr(sSRC,4)}, s{sT} offen")
    a(f"buffer_load_dwordx4 v[64:67], v{vT16}, {sr(sDST,4)}, s{sT} offen")
    a(f"s_mul_i32 s95, s{sCH}, {CHE*32}")
    a("v_mov_b32 v55, s95")
    a(f"s_cmp_eq_u32 s{sG}, 0")
    a(f"s_cselect_b32 s95, s{sM0}, s{sM1}")
    a(f"s_bitcmp1_b32 s95, s{sCH}")
    a(f"s_cselect_b32 s95, s{sGB}, -1")
    a(f"v_add_u32 v68, s94, v{vT16}")
    a("v_lshrrev_b32 v68, 2, v68")
    a(f"s_movk_i32 s96, {CHE}")
    a("v_cmp_gt_u32 s[62:63], s96, v68")
    a("s_waitcnt vmcnt(0)")
    for k in range(4):
        a(f"v_and_b32 v69, 0x1ff, v{64+k}")
        a("v_cmp_eq_u32 vcc, s95, v69")
        a(f"v_lshrrev_b32 v69, 9, v{64+k}")
        a(f"v_lshl_or_b32 v{RC+k}, v69, 14, v{RC+k}")
        a(f"v_add_u32 v69, {k}, v68")
        a(f"v_lshl_or_b32 v{RC+k}, v69, 19, v{RC+k}")
        a("s_and_b64 vcc, vcc, s[62:63]")
        a(f"v_cndmask_b32 v{RC+k}, -1, v{RC+k}, vcc")
    a("s_branch K_havrec")
    a("K_final:")
    a("s_lshl_b32 s10, s2, 9")
    a(f"s_lshl_b32 s94, s{sW}, 6")
    a("s_add_u32 s10, s10, s94")
    a(f"v_and_b32 v1, 15, v{vLANE}")
    a(f"v_lshrrev_b32 v2, 4, v{vLANE}")
    a(f"v_lshrrev_b32 v3, 2, v{vLANE}")
    a(f"v_and_b32 v4, 3, v{vLANE}")
    a("v_lshlrev_b32 v5, 18, v3")
    a("v_lshl_add_u32 v104, v4, 4, v5")
    a("v_cmp_le_u32 vcc, 4, v3")
    a(f"v_add_u32 v105, {hex(16<<18)}, v104")
    a(f"v_subrev_u32 v5, {hex((4<<18) - (256<<9))}, v104")
    a("v_cndmask_b32 v105, v105, v5, vcc")
    a(f"v_add_u32 v106, {hex((12<<18) + (256<<9))}, v104")
    a(f"v_and_b32 v5, 7, v{vJ}")
    a(f"v_xor_b32 v5, v5, v{vH}")
    a("v_lshlrev_b32 v5, 4, v5")
    a(f"v_lshl_add_u32 v5, v{vJ}, 7, v5")
    a(f"v_add_u32 v5, s{sRING}, v5")
    a(f"s_mov_b32 s94, {hex(LN2_NEG)}"); a("s_mov_b32 s95, s94")
    a("s_waitcnt vmcnt(0)")
    for tm in range(4):
        for i in range(0, 8, 2): a(f"v_pk_mul_f32 {vr(ACC+8*tm+i,2)}, {vr(ACC+8*tm+i,2)}, s[94:95]")
        for i in range(4): a(f"v_cvt_pk_bf16_f32 v{D+4*tm+i}, v{ACC+8*tm+2*i}, v{ACC+8*tm+2*i+1}")
        a(f"v_xor_b32 v6, {tm*32}, v5")
        a(f"ds_write_b128 v6, {vr(D+4*tm,4)}")
    a("v_cmp_le_u32 vcc, 4, v1")
    a("v_add_u32 v10, 16, v1")
    a("v_subrev_u32 v11, 4, v1")
    a("v_cndmask_b32 v10, v10, v11, vcc")
    a(f"v_mov_b32 v12, {4*RINGW}")
    a("v_cndmask_b32 v11, 0, v12, vcc")
    a("v_add_u32 v6, 12, v1")
    for nt, (j, gb) in enumerate((("v1", "0"), ("v10", "v11"), ("v6", "v12"))):
        a(f"v_and_b32 v8, 7, {j}")
        a("v_xor_b32 v8, v8, v2")
        a("v_lshlrev_b32 v8, 4, v8")
        a(f"v_lshl_add_u32 v8, {j}, 7, v8")
        a(f"v_add_u32 v{108+nt}, {gb}, v8")
        a(f"v_xor_b32 v{112+nt}, 64, v{108+nt}")
    a("v_lshlrev_b32 v5, 6, v1")
    a("v_lshl_add_u32 v5, v2, 4, v5")
    a(f"v_add_u32 v5, s{sRING}, v5")
    a(f"v_add_u32 v6, s{sRING}, v{vL16}")
    a(f"s_mov_b32 s94, {hex(LOG2E_NEG)}"); a("s_mov_b32 s95, s94")
    a("s_waitcnt lgkmcnt(0)")
    a("s_barrier")
    st(7)
    FB = [16, 48, 116]
    def rdF(nt):
        for T in range(8):
            if nt > 0 and T == 7: a("s_waitcnt lgkmcnt(14)")
            a(f"ds_read_b128 {vr(FB[nt]+4*T,4)}, v{(108 if T%2==0 else 112)+nt} offset:{(T>>1)*RINGW}")
    def mmF(nt): return [mf16(UA+8*nt+4*u, WU+8*T+4*u, FB[nt]+4*T, UA+8*nt+4*u) for T in range(8) for u in range(2)]
    T0 = 80
    def silu(nt, mm):
        o = UA + 8*nt; mm = list(mm)
        for i in range(8): a(f"v_mul_f32 v{T0+i}, s94, v{o+i}")
        for i in range(8):
            if mm: a(mm.pop(0))
            a(f"v_exp_f32 v{T0+i}, v{T0+i}")
        for i in range(8): a(f"v_add_f32 v{T0+i}, 1.0, v{T0+i}")
        for i in range(8):
            if mm: a(mm.pop(0))
            a(f"v_rcp_f32 v{T0+i}, v{T0+i}")
        for i in range(8): a(f"v_mul_f32 v{o+i}, v{o+i}, v{T0+i}")
        for i in range(4): a(f"v_cvt_pk_bf16_f32 v{88+4*nt+i}, v{o+2*i}, v{o+2*i+1}")
        a(f"ds_write_b128 v5, {vr(88+4*nt,4)} offset:{4096+nt*1024}")
        a(f"ds_read_b128 {vr(148+4*nt,4)}, v6 offset:{4096+nt*1024}")
    rdF(0); rdF(1)
    m = mmF(0)
    for T in range(8):
        a(f"s_waitcnt lgkmcnt({15-T})"); a(m[2*T]); a(m[2*T+1])
    rdF(2)
    a("s_waitcnt lgkmcnt(8)")
    silu(0, mmF(1))
    a("s_waitcnt lgkmcnt(2)")
    silu(1, mmF(2))
    a("s_waitcnt lgkmcnt(2)")
    a(f"buffer_store_dwordx4 v[148:151], v104, {sr(sOUT,4)}, s10 offen{OSC}")
    st(8)
    silu(2, [])
    a("s_waitcnt lgkmcnt(2)")
    a(f"buffer_store_dwordx4 v[152:155], v105, {sr(sOUT,4)}, s10 offen{OSC}")
    a("s_waitcnt lgkmcnt(0)")
    a(f"buffer_store_dwordx4 v[156:159], v106, {sr(sOUT,4)}, s10 offen{OSC}")
    if dbg:
        st(9)
        a("s_waitcnt vmcnt(0)")
        st(10)
        a("s_memtime s[98:99]\ns_waitcnt lgkmcnt(0)\ns_sub_u32 s82, s98, s100")
        a(f"s_mov_b32 s83, s{sNB}\ns_mov_b32 s71, s70")
        for i in range(16): a(f"v_mov_b32 v{16+i}, s{71+i if i < 15 else 70}")
        a(f"s_lshl_b32 s16, s2, 3\ns_add_u32 s16, s16, s{sW}\ns_lshl_b32 s16, s16, 6\ns_add_u32 s16, s16, {WS_DBG}")
        a("v_mov_b32 v3, 0")
        for i in range(4): a(f"buffer_store_dwordx4 {vr(16+4*i,4)}, v3, {sr(sWS,4)}, s16 offen offset:{16*i}")
        if "spin" in X:
            a("K_spin:\ns_memrealtime s[98:99]\ns_waitcnt lgkmcnt(0)\ns_sub_u32 s98, s98, s70\ns_cmp_lt_u32 s98, 6000\ns_cbranch_scc1 K_spin")
        if "dbg2" in X:
            a("s_load_dwordx2 s[20:21], s[0:1], 56\ns_waitcnt lgkmcnt(0)")
            srd(a, 24, 20, 0, 256)
            a("v_not_b32 v31, v31\ns_mov_b64 exec, 1")
            for i in range(1, 16): a(f"buffer_atomic_umax v{16+i}, v3, s[24:27], 0 offen offset:{4*i} sc1")
    a("K_end:")
    a("s_endpgm")
    hdr = open("standalone__mpnn_edge_mlp__graph.s.ref").read().split("; Override launch")[0]
    s = hdr + f"; @launch grid=(256,1,1) block=(512,1,1) lds={LDS}\n"
    s += f'.amdgcn_target "amdgcn-amd-amdhsa--gfx950"\n.text\n.globl {NAME}\n.p2align 8\n.type {NAME},@function\n' + a.text()
    s += '.section .rodata,"a"\n.p2align 6\n' + desc(NAME, NV)
    return s
if __name__ == "__main__":
    out = [x for x in sys.argv[1:] if not x.startswith("--")][0]
    open(out, "w").write(gen("--dbg" in sys.argv))
```

```python
from common import *
from loop import *
import os
X = os.environ.get('X', '').split(',')
STR = 8 * RINGW
MISC = STR + 2 * GS
XT = STR + 49152
TAB = XT + 24576
LDS = 163840
UA = 228; NV = 256
NPW = 215; PART0 = 215; FRAG0 = 247
sW, sG, sWC, sRING, sGB, sCELL, sT = 3, 16, 17, 18, 19, 14, 61
sC0 = 20
sP, sWS, sEAT, sOUT, sX, sSRC, sDST = 24, 28, 32, 36, 40, 44, 48
sNB, sB, sWIN, sNWIN, sM0, sM1, sSUB, sCH, sCNT = 52, 53, 54, 55, 56, 57, 58, 59, 60
sWM, sDBG, sWUP = 64, 88, 92
sSB, sFIRST, sBASE = 15, 13, 12
vLANE, vT16, vL16, vJ, vH, vCH = 9, 7, 252, 253, 254, 255
XF, WF, PA, CV, SRD_ = 16, 112, 164, 188, 200
vWT2, vSP = 148, 149
FLS, CLS, CKS, NW1 = [int(os.environ.get(k, v)) for k, v in (('FLS', 15), ('CLS', 20), ('CKS', 16), ('NW1', 1))]
vW0, vW1, vX, vPS, vWT, vXA, vSW, vSR, vQT, vZ, vONE, vPOLL = 212, 213, 214, 217, 220, 221, 222, 223, 224, 225, 226, 227
RC = 128
vSW, vQT, vPOLL, vPR = 150, 151, 152, 153
SPIN = 400000
CS = 4096 + 128

def mf16(d, x, y, c): return f"v_mfma_f32_16x16x32_bf16 {vr(d,4)}, {vr(x,4)}, {vr(y,4)}, {c if isinstance(c,str) else vr(c,4)}"

def rowoff(a, dst, row, low, t):
    a(f"v_lshl_add_u32 v{dst}, v{row}, 18, v{low}")
    a(f"v_add_u32 v{dst+1}, {hex(16<<18)}, v{dst}")
    a(f"v_subrev_u32 v{t}, {hex((4<<18) - (256<<9))}, v{dst}")
    a(f"v_cmp_le_u32 vcc, 4, v{row}")
    a(f"v_add_u32 v{dst+2}, {hex((12<<18) + (256<<9))}, v{dst}")
    a(f"v_cndmask_b32 v{dst+1}, v{dst+1}, v{t}, vcc")
def zero_struct(a, t):
    for i in range(4): a(f"v_mov_b32 v{t+i}, 0")
    a(f"v_lshlrev_b32 v{t+4}, 4, v0"); a(f"v_add_u32 v{t+4}, {STR}, v{t+4}")
    for i in range(6): a(f"ds_write_b128 v{t+4}, {vr(t,4)} offset:{i*8192}")
def loop_addr(a, t):
    a(f"v_mul_u32_u24 v{t}, {PS}, v{vH}")
    a(f"v_lshl_add_u32 v{t}, v{vJ}, 4, v{t}")
    a(f"v_add_u32 v{aA}, s{sSB}, v{t}")
    a(f"s_add_u32 s{sT}, s{sSB}, {3*PS}")
    a(f"v_lshrrev_b32 v{t}, 2, v{vLANE}")
    a(f"v_lshl_add_u32 v{aL}, v{t}, 3, s{sT}")
    a(f"v_lshrrev_b32 v{t}, 1, v{vLANE}")
    a(f"v_lshl_add_u32 v{aL2}, v{t}, 3, s{sT}")
    a(f"v_add_u32 v{aL2}, 4, v{aL2}")
    a(f"v_bfe_u32 v{t}, v{vLANE}, 4, 1")
    a(f"v_bfe_u32 v{t+1}, v{vLANE}, 1, 1")
    a(f"v_lshl_add_u32 v{t}, v{t}, 1, v{t+1}")
    a(f"v_mul_u32_u24 v{t}, {PS}, v{t}")
    a(f"v_bfe_u32 v{t+1}, v{vLANE}, 2, 2")
    a(f"v_lshl_add_u32 v{t+1}, v{vH}, 2, v{t+1}")
    a(f"v_lshl_add_u32 v{t}, v{t+1}, 4, v{t}")
    a(f"v_and_b32 v{t+1}, 1, v{vLANE}")
    a(f"v_lshl_add_u32 v{t}, v{t+1}, 3, v{t}")
    a(f"v_add_u32 v{aS}, s{sSB}, v{t}")

def wu1(a, f0, f1):
    for f in range(f0, f1):
        if f % 4 == 0 or f == f0: a(f"s_add_u32 s11, s4, {WS_WU1 + f//4*4096}")
        a(f"buffer_load_dwordx4 {vr(WU+4*f,4)}, v{vL16}, {sr(sWS,4)}, s11 offen offset:{(f%4)*1024} sc1")
def gen_front(a, st, dbg):
    a("s_cmp_ge_u32 s2, 256")
    a("s_cbranch_scc1 K_end")
    a("s_load_dwordx8 s[72:79], s[0:1], 0")
    a("s_load_dwordx8 s[80:87], s[0:1], 32")
    a("s_load_dwordx2 s[4:5], s[0:1], 64")
    if dbg: a("s_memrealtime s[70:71]\ns_memtime s[100:101]")
    T = 128; R4, C16, LOW = 116, 117, 118
    a(f"v_lshrrev_b32 v{T}, 6, v0")
    a(f"v_and_b32 v{vLANE}, 63, v0")
    a(f"v_readfirstlane_b32 s{sW}, v{T}")
    a(f"v_lshlrev_b32 v{vL16}, 4, v{vLANE}")
    a(f"v_and_b32 v{vJ}, 31, v{vLANE}")
    a(f"v_lshrrev_b32 v{vH}, 5, v{vLANE}")
    a("s_mul_i32 s96, s2, 52429"); a("s_lshr_b32 s96, s96, 18")
    a(f"s_sub_u32 s97, s96, s2"); a(f"s_add_u32 s97, s97, {PART0}"); a("s_lshl_b32 s97, s97, 9")
    a("s_mul_i32 s96, s96, 5"); a("s_sub_u32 s96, s2, s96"); a("s_lshl_b32 s96, s96, 3")
    a(f"s_mul_i32 s{sRING}, s{sW}, {RINGW}")
    a(f"v_lshrrev_b32 v{R4}, 2, v{vLANE}")
    a(f"v_and_b32 v{C16}, 3, v{vLANE}")
    a(f"v_lshlrev_b32 v{C16}, 4, v{C16}")
    a(f"s_lshl_b32 s6, s{sW}, 6")
    a(f"s_lshr_b32 s{sG}, s{sW}, 2"); a(f"s_and_b32 s{sWC}, s{sW}, 3")
    a(f"v_lshlrev_b32 v{T}, 2, v{vH}"); a(f"v_xor_b32 v{T}, v{T}, v{vJ}"); a(f"v_lshlrev_b32 v{T}, 4, v{T}")
    a(f"s_lshl_b32 s63, s{sWC}, 12")
    a(f"v_lshl_add_u32 v{T}, v{vH}, 9, v{T}"); a(f"v_add_u32 v{vW0}, s63, v{T}"); a(f"v_xor_b32 v{vW1}, 0x80, v{vW0}")
    a(f"s_lshl_b32 s7, s{sWC}, 1")
    a(f"v_add_u32 v119, s7, v{vH}")
    a(f"v_xor_b32 v{LOW}, v119, v{vJ}")
    a(f"v_lshlrev_b32 v{LOW}, 4, v{LOW}")
    a(f"v_lshl_add_u32 v{vX}, v119, 18, v{LOW}")
    a(f"v_xor_b32 v{T}, 0x80, v{vX}")
    a(f"v_add_u32 v{vX+1}, {hex(8<<18)}, v{T}")
    a(f"s_cmp_ge_u32 s{sWC}, 2"); a(f"s_cselect_b32 s11, {hex((20<<18) - (256<<9))}, 0"); a(f"s_sub_u32 s11, {hex(16<<18)}, s11")
    a(f"v_add_u32 v{vX+2}, s11, v{vX}")
    a(f"v_add_u32 v{vX+3}, {hex((4<<18) + (256<<9))}, v{T}")
    a(f"v_add_u32 v{vX+4}, {hex((12<<18) + (256<<9))}, v{vX}")
    a("s_add_u32 s11, s96, s7"); a("s_cmp_ge_u32 s11, 20"); a(f"s_cselect_b32 s11, {hex((20<<18) - (256<<9))}, 0")
    a("s_lshl_b32 s96, s96, 18"); a("s_add_u32 s96, s96, s97"); a("s_sub_u32 s11, s96, s11")
    a(f"v_add_u32 v{vX+5}, s11, v{T}")
    a(f"s_lshl_b32 s8, s{sW}, 10")
    a("s_lshl_b32 s9, s2, 9")
    a(f"v_mov_b32 v{vZ}, 0"); a(f"v_mov_b32 v{T+2}, 0"); a(f"v_mov_b32 v{vONE}, 1")
    a("s_lshl_b32 s10, s2, 7"); a(f"s_add_u32 s10, s10, {WS_FLAG}")
    a("s_lshr_b32 s68, s2, 3"); a("s_lshl_b32 s68, s68, 13"); a("s_add_u32 s68, s68, s8")
    a("s_waitcnt lgkmcnt(0)")
    srd(a, sX, 72, 0, NBYTES)
    srd(a, sWM, 80, 0, 528 * 512)
    srd(a, sWS, 4, 0, WS_END)
    srd(a, sWUP, 82, 0, 512 * 512)
    def w7(tag, body, w=0):
        a(f"s_cmp_lg_u32 s{sW}, {w}"); a(f"s_cbranch_scc1 K_n{tag}")
        body(); a(f"K_n{tag}:")
    def grp(g, tag, body):
        a(f"s_cmp_lg_u32 s{sG}, {g}"); a(f"s_cbranch_scc1 K_g{tag}")
        body(); a(f"K_g{tag}:")
    def one(x): a("s_mov_b64 exec, 1"); a(x); a("s_mov_b64 exec, -1")
    def flag(tag): w7("fl" + tag, lambda: one(f"buffer_store_dword v{vONE}, v{vZ}, {sr(sWS,4)}, s10 offen sc0 sc1"))
    def xdma():
        for i in range(6):
            a(f"s_add_u32 m0, s8, {XT + i*4096}"); a("s_nop 0")
            a(f"buffer_load_dwordx4 v{vX+i}, {sr(sX,4)}, s9 offen lds")
    def pref():
        a(f"buffer_load_dwordx4 v[200:203], v{vL16}, {sr(sWM,4)}, s68 offen")
        a(f"buffer_load_dwordx4 v[200:203], v{vL16}, {sr(sWUP,4)}, s68 offen")
    def wl(s):
        R, o = (sWUP, s - 8) if 8 <= s < 16 else (sWM, s if s < 8 else s - 8)
        L = [f"buffer_load_dwordx4 v{vW0+i%2}, {sr(R,4)}, s11 offen offset:{i*1024} lds" for i in range(4)]
        L[0] = f"s_add_u32 m0, s63, {(s%5)*16384}\ns_mov_b32 s11, {o*16384}\n" + L[0]
        return L
    def wdma(s):
        for x in wl(s): a(x)
    def consts(full=True):
        if full: srd(a, sDBG, 86, 0, 256); srd(a, sOUT, 84, 0, NBYTES)
        srd(a, sEAT, 74, 0, 0); a(f"s_or_b32 s{sEAT+1}, s{sEAT+1}, {32<<16}")
        srd(a, sP, sWS, 0, NBYTES + WS_P)
        a(f"s_mul_i32 s{sSB}, s{sG}, {GS}"); a(f"s_add_u32 s{sSB}, s{sSB}, {STR}")
        a(f"s_lshl_b32 s11, s{sWC}, 7")
        for t in range(2):
            for i in range(2): a(f"s_add_u32 s{sC0+2*t+i}, s11, {WS_P + 64*t - t*2048 - i*1024}")
        a(f"s_lshl_b32 s{sGB}, s{sG}, 8"); a(f"s_add_u32 s{sGB}, s{sGB}, s2")
        a(f"s_mul_i32 s{sCELL}, s{sGB}, {CS}"); a(f"s_add_u32 s{sCELL}, s{sCELL}, {WS_CELL}")
        a(f"s_mov_b32 s{sWIN}, 0"); a(f"s_mov_b32 s{sSUB}, -1"); a(f"s_mov_b32 s{sFIRST}, 1"); a(f"s_mov_b32 s{sBASE}, 0")
        a(f"v_and_b32 v{vT16}, 0xff, v0"); a(f"v_lshlrev_b32 v{vT16}, 4, v{vT16}")
        a(f"v_bfe_u32 v{vCH}, v0, 3, 5"); a(f"v_mul_u32_u24 v{vCH}, {CHE}, v{vCH}")
        U = 228; G4, R2, N16 = 240, 241, 242
        zero_struct(a, U); loop_addr(a, U)
        a(f"v_lshrrev_b32 v{G4}, 4, v{vLANE}"); a(f"v_bfe_u32 v{R2}, v{vLANE}, 2, 2"); a(f"v_and_b32 v{N16}, 15, v{vLANE}")
        a(f"v_lshlrev_b32 v{U}, 4, v{G4}"); a(f"v_xor_b32 v{L4V+1}, v{U}, v{C16}"); a(f"v_mov_b32 v{L4V+3}, v{L4V+1}")
        a(f"v_xor_b32 v{U}, v{G4}, v{vLANE}"); a(f"v_and_b32 v{U}, 1, v{U}"); a(f"v_lshlrev_b32 v{L4V+5}, 4, v{U}")
        a(f"v_lshlrev_b32 v{U}, 3, v{vH}"); a(f"v_sub_u32 v{U}, v{vJ}, v{U}")
        a(f"v_and_b32 v{U+1}, 1, v{U}"); a(f"v_lshlrev_b32 v{U+1}, 4, v{U+1}")
        a(f"v_mov_b32 v{U+2}, 0x3f80"); a(f"v_lshlrev_b32 v{U+1}, v{U+1}, v{U+2}"); a(f"v_ashrrev_i32 v{U}, 1, v{U}")
        for m in range(2):
            for dw in range(4):
                a(f"v_cmp_eq_u32 vcc, {8*m+dw}, v{U}"); a(f"v_cndmask_b32 v{ID+4*m+dw}, 0, v{U+1}, vcc")
        a(f"v_xor_b32 v{U}, v{R2}, v{vH}"); a(f"v_lshlrev_b32 v{U}, 4, v{U}"); a(f"v_lshl_add_u32 v{U}, v{vJ}, 6, v{U}")
        a(f"v_add_u32 v{aP0}, s{sRING}, v{U}"); a(f"v_xor_b32 v{aP1}, 32, v{aP0}")
        a(f"v_bfe_u32 v{U}, v{vLANE}, 3, 1"); a(f"v_xor_b32 v{U}, v{U}, v{vH}"); a(f"v_lshlrev_b32 v{U}, 4, v{U}")
        a(f"v_lshl_add_u32 v{U}, v{vJ}, 5, v{U}"); a(f"v_add_u32 v{aE}, s{sRING}, v{U}")
        a(f"v_lshl_add_u32 v{U}, v{G4}, 3, v{R2}"); a(f"v_lshl_add_u32 v{U}, v{U}, 9, v{C16}"); a(f"v_xor_b32 v{U+1}, s{sW}, v{R2}"); a(f"v_lshl_add_u32 v{vWT}, v{U+1}, 6, v{U}"); a(f"v_add_u32 v{vWT2}, 0x10000, v{vWT}")
        a(f"v_xor_b32 v{U}, v{G4}, v{N16}"); a(f"v_lshlrev_b32 v{U}, 4, v{U}"); a(f"v_lshl_add_u32 v{U}, v{N16}, 9, v{U}"); a(f"v_add_u32 v{vXA}, {XT}, v{U}"); a(f"v_xor_b32 v{vSP}, s6, v{vXA}")
        rowoff(a, U, R4, C16, 243)
        a(f"v_and_b32 v243, 7, v{vJ}"); a(f"v_xor_b32 v243, v243, v{vH}"); a("v_lshlrev_b32 v243, 4, v243"); a(f"v_lshl_add_u32 v{U+3}, v{vJ}, 7, v243")
        a(f"v_cmp_le_u32 vcc, 4, v{N16}"); a(f"v_add_u32 v243, 16, v{N16}"); a(f"v_subrev_u32 v244, 4, v{N16}")
        a("v_cndmask_b32 v243, v243, v244, vcc"); a(f"v_mov_b32 v245, {4*RINGW}"); a("v_cndmask_b32 v244, 0, v245, vcc"); a(f"v_add_u32 v246, 12, v{N16}")
        for nt, (j, gb) in enumerate(((f"v{N16}", "0"), ("v243", "v244"), ("v246", "v245"))):
            a(f"v_and_b32 v247, 7, {j}"); a(f"v_xor_b32 v247, v247, v{G4}"); a("v_lshlrev_b32 v247, 4, v247")
            a(f"v_lshl_add_u32 v247, {j}, 7, v247"); a(f"v_add_u32 v{U+4+nt}, {gb}, v247"); a(f"v_xor_b32 v{U+8+nt}, 64, v{U+4+nt}")
        a(f"v_lshlrev_b32 v243, 6, v{N16}"); a(f"v_lshl_add_u32 v{U+7}, v{G4}, 4, v243")
        a(f"v_add_u32 v243, {TAB}, v{vL16}")
        for i in range(3): a(f"ds_write_b128 v243, {vr(U+4*i,4)} offset:{i*1024}")
        a(f"s_mul_i32 s11, s{sW}, 3072"); a(f"s_add_u32 s11, s11, {XT}")
        a(f"v_add_u32 v{vSW}, s11, v{U+7}"); a(f"s_add_u32 s11, s8, {XT}"); a(f"v_add_u32 v{vSR}, s11, v{vL16}")
        a(f"s_mul_i32 s11, s{sWC}, 6144"); a(f"s_mul_i32 s{sT}, s{sG}, 1280"); a(f"s_add_u32 s11, s11, s{sT}"); a(f"s_add_u32 s11, s11, {XT}")
        a(f"v_lshl_add_u32 v243, v{vH}, 3, v{R2}"); a(f"v_and_b32 v244, 1, v{G4}"); a("v_lshl_add_u32 v243, v243, 1, v244")
        a(f"v_lshrrev_b32 v244, 1, v{C16}"); a("v_lshl_add_u32 v243, v243, 5, v244"); a(f"v_add_u32 v{vQT}, s11, v243")
        for t in range(2):
            for i in range(4): a(f"v_mov_b32 v{Q+8*t+4+i}, 0")
        a(f"s_lshl_b32 s11, s{sW}, 5"); a(f"v_add_u32 v{vPOLL}, s11, v{vJ}"); a(f"v_lshlrev_b32 v{vPOLL}, 7, v{vPOLL}")
        a(f"s_mov_b32 s68, {hex(LOG2E_NEG)}"); a("s_mov_b32 s69, s68")
    order = []
    def need(tag): return len(order) - 1 - max(i for i, t in enumerate(order) if t == tag)
    def wreads(s):
        for u in range(2):
            for q in range(2):
                a(f"ds_read_b64_tr_b16 {vr(WF+8*(s%2)+4*u+2*q,2)}, v{vWT if s%5 < 4 else vWT2} offset:{(s%5%4)*16384+q*2048+u*8}")
    def xreads(s):
        if s: a(f"v_xor_b32 v{T+s%2}, {s*64}, v{vXA}")
        for nt in range(3): a(f"ds_read_b128 {vr(XF+12*s+4*nt,4)}, v{T+s%2 if s else vXA} offset:{nt*8192}")
    def step(s, acc, extra=None, post=None, va=[], g0=[], tag=''):
        rds = []
        if extra: extra()
        if s < 23:
            a(f"s_waitcnt vmcnt({12 if tag else need(f'w{s+1}')}) lgkmcnt(0)")
            a("s_barrier")
            if "steps" in X: a(f"s_memrealtime s[98:99]\ns_waitcnt lgkmcnt(0)\nv_writelane_b32 v154, s98, {s}")
            if post: post()
            n0 = len(a.L); wreads(s + 1)
            if s < 7: xreads(s + 1)
            rds = a.L[n0:]; del a.L[n0:]
        else: a("s_waitcnt lgkmcnt(0)")
        mm = [mf16(acc+8*nt+4*u, WF+8*(s%2)+4*u, XF+12*(s%8)+4*nt, "0" if s % 8 == 0 else acc+8*nt+4*u) for nt in range(3) for u in range(2)]
        def mix(vm):
            n = -(-len(va) // 6)
            for i in range(6):
                a(mm[i])
                for x in rds[2*i:2*i+2]: a(x)
                if i < len(vm): a(vm[i])
                for x in va[i*n:i*n+n]: a(x)
        if s + 5 < 24:
            a(f"s_cbranch_vccnz K_d{s}{tag}"); mix(wl(s + 5)); a(f"s_branch K_e{s}{tag}"); a(f"K_d{s}{tag}:"); mix(g0); a(f"K_e{s}{tag}:")
            if not tag: order.extend([f"w{s+5}"] * 4)
        else: mix([])
    def stage(rd):
        L = []
        for nt in range(3):
            o = PA + 8*nt
            if rd: L += [f"v_mul_f32 v{o+i}, s68, v{o+i}" for i in range(8)]
            else: L += [f"v_pk_mul_f32 {vr(o+i,2)}, {vr(o+i,2)}, s[68:69]" for i in range(0, 8, 2)]
            L += [f"v_cvt_pk_bf16_f32 v{CV+4*nt+i}, v{o+2*i}, v{o+2*i+1}" for i in range(4)]
            L += [f"ds_write_b128 v{vSP if rd else vSW}, {vr(CV+4*nt,4)} offset:{nt*(8192 if rd else 1024)}"]
        return L
    def pc(): a(f"buffer_load_dword v{T+3}, v{T+2}, {sr(sDBG,4)}, 0 offen sc0 sc1")
    def pc0(): a(f"v_and_b32 v{T+2}, 3, v{vLANE}"); a(f"v_lshlrev_b32 v{T+2}, 6, v{T+2}"); pc()
    def spin(tag, cmp, ld, first):
        def f():
            a(f"s_mov_b32 s11, {SPIN}"); a(first)
            a(f"K_{tag}:")
            a(f"{cmp}, v{T+3}"); a("s_cmp_eq_u64 s[96:97], 0"); a(f"s_cbranch_scc1 K_n{tag}")
            ld(); a("s_waitcnt vmcnt(0)")
            a("s_sub_u32 s11, s11, 1"); a(f"s_cbranch_scc0 K_{tag}")
        w7(tag, f, 4)
    def pa(): a(f"buffer_load_dword v{T+3}, v{T+2}, {sr(sWS,4)}, s62 offen sc0 sc1")
    def pa0(): a(f"s_mov_b32 s62, {WS_FLAG + PART0*128}"); a(f"v_lshlrev_b32 v{T+2}, 7, v{vJ}"); pa()
    def pf0(): a(f"s_mov_b32 s62, {WS_FLAG + FRAG0*128}"); a(f"v_and_b32 v{T+2}, 7, v{vLANE}"); a(f"v_lshlrev_b32 v{T+2}, 7, v{T+2}"); pa()
    def ckc(tag, n):
        spin("pc" + tag, "v_cmp_gt_u32 s[96:97], 8", pc, f"s_waitcnt vmcnt({n})")
    def cnt():
        a("s_and_b32 s62, s2, 3"); a("s_lshl_b32 s62, s62, 6")
        one(f"buffer_atomic_add v{vONE}, v{vZ}, {sr(sDBG,4)}, s62 offen sc1")
    a(f"s_cmp_ge_u32 s2, {NPW}")
    a("s_cbranch_scc1 K_notp")
    def setg(): a(f"s_cmp_eq_u32 s{sG}, 0"); a("s_cselect_b64 vcc, -1, 0")
    grp(0, "x", xdma)
    grp(1, "w", lambda: (wdma(0), wdma(1))); order += ["w0"] * 4 + ["w1"] * 4
    pref(); order += ["pf"] * 2
    srd(a, sSRC, 76, 0, E * 4); srd(a, sDST, 78, 0, E * 4)
    consts()
    st(3)
    grp(1, "w2", lambda: [wdma(s) for s in (2, 3, 4)]); order += ["w2"] * 4 + ["w3"] * 4 + ["w4"] * 4
    grp(0, "x2", lambda: a("s_waitcnt vmcnt(2)"))
    a(f"s_waitcnt vmcnt({need('w0')})")
    setg()
    a("s_barrier")
    st(1)
    wreads(0); xreads(0)
    for s in range(8): step(s, PA)
    a(f"s_add_u32 s7, s9, {WS_P}"); a(f"s_lshl_b32 s4, s{sW}, 14")
    rd = "\n".join(f"ds_read_b128 {vr(CV+4*i,4)}, v{vSR} offset:{i*4096}" for i in range(6))
    ss = [f"s_waitcnt lgkmcnt({5-i})\nbuffer_store_dwordx4 {vr(CV+4*i,4)}, v{vX+i}, {sr(sP,4)}, s7 offen sc0 sc1" for i in range(6)]
    step(8, UA, va=stage(True)); step(9, UA, g0=["", rd, "", ss[0], ss[1], "\n".join(ss[2:])])
    a("s_branch K_q")
    a("K_notp:")
    srd(a, sSRC, 76, 0, E * 4); srd(a, sDST, 78, 0, E * 4)
    a("v_lshlrev_b32 v16, 4, v0")
    a(f"s_cmp_ge_u32 s2, {FRAG0}")
    a("s_cbranch_scc1 K_frag")
    a(f"s_sub_u32 s7, s2, {PART0}")
    a(f"s_mul_i32 s62, s7, {CHE*4}")
    DS_, SR_, GB_, SL_, EL_ = 48, 60, 72, 84, 96
    def clr():
        a("s_mul_i32 s4, s7, 7"); a("s_sub_u32 s4, s4, 1"); a(f"v_add_u32 v17, s4, v{vLANE}"); a("v_add_u32 v18, 32, v17")
        a(f"v_cmp_gt_u32 vcc, {PART0}, v17"); a("v_cndmask_b32 v17, v18, v17, vcc"); a("v_writelane_b32 v17, s2, 0")
        a(f"s_mov_b32 s4, {WS_FLAG}"); a("v_lshlrev_b32 v17, 7, v17")
        a("s_mov_b64 exec, 0xff"); a(f"buffer_store_dword v{vZ}, v17, {sr(sWS,4)}, s4 offen sc0 sc1"); a("s_mov_b64 exec, -1")
    w7("clr", clr, 7)
    for R, V in ((sDST, DS_), (sSRC, SR_)):
        for i in range(3):
            a(f"s_add_u32 s11, s62, {i*8192}")
            a(f"buffer_load_dwordx4 {vr(V+4*i,4)}, v16, {sr(R,4)}, s11 offen")
    a("v_lshrrev_b32 v19, 3, v0"); a("v_and_b32 v28, 7, v0"); a("v_lshlrev_b32 v29, 4, v28"); a(f"v_mul_u32_u24 v19, {CS}, v19"); a(f"v_add_u32 v{T+2}, v19, v29")
    a("s_lshl_b32 s7, s7, 7"); a(f"s_add_u32 s7, s7, {WS_CELL}")
    for i in range(4): a(f"v_mov_b32 v{20+i}, -1")
    for i in range(8): a(f"ds_write_b128 v16, v[20:23] offset:{2048+i*8192}")
    a("v_lshlrev_b32 v17, 2, v0")
    a(f"ds_write_b32 v17, v{vZ}")
    a("v_lshlrev_b32 v17, 21, v0")
    for r in range(12): a(f"v_add_u32 v{EL_+r}, {hex(((r//4)*2048 + r%4) << 19)}, v17")
    a(f"s_movk_i32 s11, {CHE//4 - 1024}")
    a("v_cmp_gt_u32 s[96:97], s11, v0")
    a("v_mov_b32 v18, 33")
    a(f"v_lshrrev_b32 v19, 3, v{vLANE}"); a(f"s_lshl_b32 s11, s{sW}, 3"); a("v_lshl_add_u32 v19, v19, 6, v28"); a("v_add_lshl_u32 v19, v19, s11, 2")
    srd(a, sDBG, 86, 0, 256); srd(a, sOUT, 84, 0, NBYTES)
    a("s_waitcnt lgkmcnt(0)")
    a("s_barrier")
    for i in range(3):
        a(f"s_waitcnt vmcnt({5-i})")
        if i == 0: w7("cnt", cnt, 7)
        if i == 2:
            a("s_mov_b64 exec, s[96:97]"); a("s_cbranch_execz K_p1")
        for k in range(4):
            r = 4*i + k
            a(f"v_lshlrev_b32 v{GB_+r}, 2, v{DS_+r}")
            a(f"v_and_b32 v{GB_+r}, 0x7fc, v{GB_+r}")
            a(f"ds_add_rtn_u32 v{SL_+r}, v{GB_+r}, v18")
    a("K_p1:")
    a("s_mov_b64 exec, -1")
    st(1)
    for r in range(12):
        a(f"v_lshrrev_b32 v{DS_+r}, 9, v{DS_+r}")
        a(f"v_lshl_or_b32 v{EL_+r}, v{DS_+r}, 14, v{EL_+r}")
        a(f"v_lshlrev_b32 v{GB_+r}, 5, v{GB_+r}")
    a(f"s_cmp_eq_u32 s{sW}, 7\ns_cbranch_scc1 K_s7\ns_waitcnt vmcnt(0)\nK_s7:\ns_waitcnt vmcnt(1) lgkmcnt(0)")
    grp(0, "xc", xdma)
    for r in range(12):
        if r == 8: a("s_mov_b64 exec, s[96:97]"); a("s_cbranch_execz K_p2")
        a(f"v_bfe_u32 v{SL_+r}, v{SL_+r}, 3, 5")
        a(f"v_or_b32 v{EL_+r}, v{EL_+r}, v{SR_+r}")
        a(f"v_lshl_add_u32 v{SL_+r}, v{SL_+r}, 2, v{GB_+r}")
        a(f"ds_write_b32 v{SL_+r}, v{EL_+r} offset:2048")
    a("K_p2:")
    a("s_mov_b64 exec, -1")
    a(f"s_movk_i32 s11, {33*32}")
    a("s_waitcnt lgkmcnt(0)")
    a("s_barrier")
    a("ds_read_b32 v17, v19")
    a("s_waitcnt lgkmcnt(0)")
    a("v_cmp_lt_u32 vcc, s11, v17")
    a("s_cbranch_vccz K_p4")
    for i in range(4): a(f"v_mov_b32 v{24+i}, -2")
    a("v_lshlrev_b32 v19, 5, v19")
    a("s_mov_b64 exec, vcc")
    for i in range(8): a(f"ds_write_b128 v19, v[24:27] offset:{2048+16*i}")
    a("s_mov_b64 exec, -1")
    a("K_p4:")
    for i in range(8): a(f"ds_read_b128 {vr(PA+4*i,4)}, v16 offset:{2048+i*8192}")
    for i in range(8):
        a(f"s_waitcnt lgkmcnt({7-i})")
        a(f"buffer_store_dwordx4 {vr(PA+4*i,4)}, v{T+2}, {sr(sWS,4)}, s7 offen sc0 sc1")
        if i < 7: a(f"s_add_u32 s7, s7, {64*CS}")
    st(3)
    a("s_barrier")
    grp(1, "wc", lambda: (wdma(8), wdma(9)))
    consts(False)
    grp(0, "c0", lambda: a("s_waitcnt vmcnt(8)"))
    a("s_barrier")
    def xall():
        for s in range(8):
            xreads(s)
            if s % 4 == 3: a("s_waitcnt lgkmcnt(3)")
    xall()
    grp(0, "c1", lambda: a("s_waitcnt vmcnt(0)"))
    a("s_waitcnt vmcnt(4)")
    a("s_barrier")
    flag("c")
    grp(1, "wd", lambda: [wdma(s) for s in range(10, 13)])
    a("s_branch K_sig2")
    a("K_frag:")
    grp(0, "xf", xdma)
    a(f"s_sub_u32 s7, s2, {FRAG0}")
    a(f"v_bfe_u32 v17, v{vLANE}, 2, 2")
    a(f"v_bfe_u32 v18, v{vLANE}, 4, 1")
    a("s_lshl_b32 s62, s7, 14")
    a("s_cmp_eq_u32 s7, 8")
    a(f"s_cselect_b32 s{sX}, s80, s82"); a(f"s_cselect_b32 s{sX+1}, s81, s83")
    a(f"s_cselect_b32 s{sX+2}, s{sWM+2}, s{sWUP+2}")
    for i in range(2):
        a(f"s_add_u32 m0, s8, {i*8192}")
        a(f"s_add_u32 s11, s62, {(i%2)*8192 + (0x20000 if i < 2 else 0)}")
        a(f"buffer_load_dwordx4 v16, {sr(sX,4)}, s11 offen lds")
    consts()
    a("s_waitcnt vmcnt(0)")
    a("s_barrier")
    a("s_cmp_eq_u32 s7, 8")
    a("s_cbranch_scc1 K_w3")
    a(f"v_lshl_add_u32 v19, v{vH}, 4, v17"); a("v_lshl_add_u32 v21, v18, 3, v19"); a("v_lshl_add_u32 v19, v18, 2, v19")
    a(f"v_add_u32 v20, s6, v{C16}"); a("v_lshl_add_u32 v19, v19, 9, v20"); a("v_lshl_add_u32 v21, v21, 9, v20")
    a(f"s_lshl_b32 s62, s{sW}, 14"); a("s_lshl_b32 s7, s7, 11"); a("s_add_u32 s62, s62, s7"); a(f"s_add_u32 s62, s62, {WS_WU2}")
    for u in range(2):
        for q in range(2):
            a(f"ds_read_b64_tr_b16 {vr(PA+4*u+2*q,2)}, v19 offset:{q*4096+u*8}")
    a(f"s_add_u32 s7, s62, {WS_WU1-WS_WU2}")
    a("s_waitcnt lgkmcnt(0)")
    for u in range(2): a(f"buffer_store_dwordx4 {vr(PA+4*u,4)}, v{vL16}, {sr(sWS,4)}, s62 offen offset:{u*1024} sc0 sc1")
    a("s_branch K_sig")
    a("K_w3:")
    a(f"v_lshl_add_u32 v19, v{vH}, 3, v17"); a("v_lshlrev_b32 v19, 9, v19"); a("v_lshl_add_u32 v19, v18, 5, v19")
    a(f"v_lshrrev_b32 v20, 1, v{C16}"); a("v_add3_u32 v19, v19, v20, s6")
    a(f"s_add_u32 s62, s8, {WS_W3}")
    for q in range(2): a(f"ds_read_b64_tr_b16 {vr(PA+2*q,2)}, v19 offset:{q*2048}")
    a("s_waitcnt lgkmcnt(0)")
    for i in range(4):
        a(f"v_lshlrev_b32 v20, 16, v{PA+i}"); a(f"v_and_b32 v21, 0xffff0000, v{PA+i}")
        a("v_mul_f32 v20, s68, v20"); a("v_mul_f32 v21, s68, v21")
        a(f"v_cvt_pk_bf16_f32 v{PA+i}, v20, v21")
    a(f"buffer_store_dwordx4 {vr(PA,4)}, v{vL16}, {sr(sWS,4)}, s62 offen sc0 sc1")
    a("K_sig:")
    a("s_barrier")
    grp(1, "wf", lambda: [wdma(s) for s in range(8, 13)])
    xall()
    a("s_waitcnt vmcnt(16)")
    a("s_barrier")
    a("K_sig2:")
    wreads(8)
    setg()
    step(8, UA, tag="n"); step(9, UA, tag="n")
    a("K_q:")
    st(2)
    def poll():
        a(f"buffer_load_dwordx4 {vr(RC,4)}, v{vT16}, {sr(sWS,4)}, s{sCELL} offen sc1"); order.append("rc")
    for s in range(10, 24):
        ex = [f for k, f in ((FLS - 4, lambda: w7("pc0", pc0, 4)), (FLS, lambda: (ckc("p", 16), a("s_cbranch_vccz K_fw\ns_waitcnt vmcnt(0)\nK_fw:"))),
                             (CLS, lambda: spin("pa", "v_cmp_ne_u32 s[96:97], 1", pa, f"s_waitcnt vmcnt({4*(min(CLS,19)-CKS)})"))) if k == s]
        po = [f for k, f in ((FLS, lambda: flag("p")), (CKS, lambda: w7("pa0", pa0, 4)), (CLS, poll)) if k == s]
        step(s, UA if s < 16 else PA, lambda: [f() for f in ex], lambda: [f() for f in po],
             [f"v_mul_f32 v{UA+i}, s68, v{UA+i}" for i in range(12*(s-19), 12*(s-18))] if s in (19, 20) else [])
    a(f"s_or_b32 s{sP+1}, s{sP+1}, {512<<16}")
    a(f"s_mov_b32 s7, {WS_FLAG}")
    a(f"s_lshl_b32 s10, s{sW}, 14")
    a(f"buffer_load_dword v{vPR}, v{vPOLL}, {sr(sWS,4)}, s7 offen sc0 sc1")
    a("s_nop 0")
    for x in stage(False): a(x)
    if "steps" in X:
        a(f"s_waitcnt vmcnt({NW1})")
        a(f"s_lshl_b32 s11, s2, 3\ns_add_u32 s11, s11, s{sW}\ns_lshl_b32 s11, s11, 8\ns_add_u32 s11, s11, {WS_DBG+0x40000}")
        a(f"v_lshlrev_b32 v155, 2, v{vLANE}\nbuffer_store_dword v154, v155, {sr(sWS,4)}, s11 offen")
```

```python
from common import *
aA, aS, aL, aP0, aP1, aL2, aE, L4V = 1, 2, 3, 4, 5, 6, 8, 10
ACC, D, EE, MSG, PF, EA, OH, S, Q, W3, ID, WU = 16, 48, 80, 96, 104, 112, 116, 124, 132, 148, 156, 164
SLOT = 5120; RINGW = 2 * SLOT
NBLK = 13; CAP = NBLK * 32
PS = CAP * 16; GS = CAP * 56
BS = 512
def mf32(d, x, y, c): return f"v_mfma_f32_32x32x16_bf16 {vr(d,16)}, {vr(x,4)}, {vr(y,4)}, {c if isinstance(c,str) else vr(c,16)}"

class Loop:
    def __init__(self, a, sg, opt=()):
        self.a = a; self.sg = sg; self.opt = opt
    def rdO(self, off):
        return [f"ds_read_b128 {vr(OH,4)}, v{aA} offset:{off}", f"ds_read_b128 {vr(OH+4,4)}, v{aA} offset:{off+PS}"]
    def rdE(self, slot): return f"ds_read_b128 {vr(EA,4)}, v{aE} offset:{slot*SLOT+4096}"
    def rdP(self, slot, t):
        return [f"ds_read_b128 {vr(PF,4)}, v{aP0} offset:{slot*SLOT+t*2048}", f"ds_read_b128 {vr(PF+4,4)}, v{aP1} offset:{slot*SLOT+t*2048}"]
    def rdS(self, off):
        return [f"ds_read_b64_tr_b16 {vr(S+4*m+2*q,2)}, v{aS} offset:{off+m*256+q*128}" for m in range(2) for q in range(2)]
    def rdL(self, off, dst=L4V):
        o = off // 2
        return [f"ds_read_b32 v{dst}, v{aL} offset:{o}", f"ds_read_b32 v{dst+2}, v{aL} offset:{o+128}", f"ds_read_b32 v{dst+4}, v{aL2} offset:{o}"]
    def dma(self, slot, lv=L4V):
        g = self.sg; L = []
        for k, (t, i) in enumerate(((0, 0), (1, 0), (0, 1), (1, 1))):
            L.append((f"s_add_u32 m0, s{g['RING']}, {slot*SLOT}" if k == 0 else None, f"buffer_load_dwordx4 {vr(lv+2*i,2)}, {sr(g['P'],4)}, s{g['C0']+2*t+i} idxen offen offset:{t*2048+i*1024}{g.get('SC','')} lds"))
        L.append((f"s_add_u32 m0, s{g['RING']}, {slot*SLOT+4096}", f"buffer_load_dwordx4 {vr(lv+4,2)}, {sr(g['EAT'],4)}, 0 idxen offen{g.get('ES','')} lds"))
        return L
    def M1(self, t):
        d = D + 16 * t
        return [mf32(d, OH, Q+8*t, "0"), mf32(d, OH+4, Q+8*t+4, d), mf32(d, EA, W3+4*t, d), mf32(d, PF, ID, d), mf32(d, PF+4, ID+4, d)]
    def M2(self, t):
        return [mf32(ACC+16*t, MSG, S, ACC+16*t), mf32(ACC+16*t, MSG+4, S+4, ACC+16*t)]
    def V(self, t, ins):
        d = D + 16 * t
        ops = [f"v_exp_f32 v{EE+i}, v{d+i}" for i in range(16)]
        ops += [f"v_pk_add_f32 {vr(EE+i,2)}, {vr(EE+i,2)}, 1.0 op_sel_hi:[1,0]" for i in range(0, 16, 2)]
        ops += [f"v_rcp_f32 v{EE+i}, v{EE+i}" for i in range(16)]
        ops += [f"v_pk_mul_f32 {vr(EE+i,2)}, {vr(EE+i,2)}, {vr(d+i,2)}" for i in range(0, 16, 2)]
        ops += [f"v_cvt_pk_bf16_f32 v{MSG+i}, v{EE+2*i}, v{EE+2*i+1}" for i in range(8)]
        for i, o in enumerate(ops):
            for x in ins.get(i, []):
                if "nods" in self.opt and x.startswith("ds_"): continue
                if "novm" in self.opt and x.startswith("buffer_"): continue
                if "nosalu" in self.opt and (x.startswith("s_add_u32 m0") or x.startswith("s_waitcnt")): continue
                self.a(x)
            self.a(o)
    def block(self, par, P):
        g = self.sg; off = par * BS
        def add(i, x): ins.setdefault(i, []).append(x)
        ins = {}
        m1, m2 = self.M1(1), self.M2(1)
        for i, x in zip(P["m2"], m2): add(i, x)
        for i, x in zip(P["p"], self.rdP(par, 1)): add(i, x)
        for i, x in zip(P["l"], self.rdL(off + 2 * BS)): add(i, x)
        for i, x in zip(P["s"], self.rdS(off)): add(i, x)
        for i, x in zip(P["o"], self.rdO(off + BS)): add(i, x)
        add(P["sel"], f"s_add_u32 s{g['T']}, s{g['B']}, 2"); add(P["sel"], f"s_cmp_lt_u32 s{g['T']}, s{g['NB']}")
        add(P["sel"] + 1, f"s_cselect_b32 s{g['P']+2}, {g['PN']}, 0"); add(P["sel"] + 1, f"s_cselect_b32 s{g['EAT']+2}, {g['EN']}, 0")
        if "prio" in self.opt:
            add(P["sel"] + 1, f"s_cbranch_scc1 L_pr{par}\ns_setprio 0\nL_pr{par}:")
        add(P["m1"][3], "s_waitcnt lgkmcnt(0)")
        for i, x in zip(P["m1"], m1): add(i, x)
        prev = None
        for i, (x, y) in zip(P["d"], self.dma(par)):
            if x and prev == i: add(i, x); add(i, "s_nop 0")
            elif x: add(i - 1, x)
            add(i, y); prev = i
        self.V(0, ins)
        ins = {}
        m1, m2 = self.M1(0), self.M2(0)
        for i, x in zip(P["m2"], m2): add(i, x)
        add(P["p2"][0], "s_waitcnt vmcnt(5)")
        for i, x in zip(P["p2"], [self.rdE(1 - par)] + self.rdP(1 - par, 0)): add(i, x)
        add(P["m1"][2], "s_waitcnt lgkmcnt(0)")
        for i, x in zip(P["m1"], m1): add(i, x)
        if par == 1 and "wu" in self.opt:
            add(P["p2"][0], f"s_cmp_lt_u32 s{g['WUN']}, 4\ns_cbranch_scc1 L_wu\nL_wub:")
        if par == 1:
            for r, d in ((aA, 2*BS), (aS, 2*BS), (aL, BS), (aL2, BS)): add(P["adv"], f"v_add_u32 v{r}, {d if 'noadv' not in self.opt else 0}, v{r}")
        add(P["cnt"], f"s_add_u32 s{g['B']}, s{g['B']}, 1"); add(P["cnt"] + 1, f"s_cmp_ge_u32 s{g['B']}, s{g['NB']}")
        self.V(1, ins)
PL1 = dict(m2=(0, 3), m1=(6, 9, 24, 27, 30), p=(16, 16), l=(16, 16, 16), s=(16,)*4, o=(16, 16), sel=16, d=(40, 40, 40, 40, 41), p2=(16, 16, 16), adv=48, cnt=16)
PL0 = dict(m2=(0, 3), m1=(6, 9, 24, 27, 30), p=(1, 2), l=(4, 5), s=(7, 8, 10, 11), o=(12, 13), sel=14, d=(31, 33, 35, 37, 39), p2=(1, 2, 4), adv=48, cnt=34)
```

```python
import os, sys
from common import *
from loop import *
from front import *
X = os.environ.get('X', '').split(',')
NAME = "standalone__mpnn_edge_mlp__graph_kernel"
OOB = 0x7ff00000
OSC = ' sc0 sc1' if 'osc' in X else ' nt' if 'ont' in X else ' sc0 sc1 nt' if 'oall' in X else ''
def gen(dbg=False):
    a = Asm()
    def st(n):
        if dbg:
            a(f"s_memrealtime s[98:99]\ns_waitcnt lgkmcnt(0)\ns_mov_b32 s{71+n}, s98")
    a(NAME + ":")
    gen_front(a, lambda n: st(n + 12 if n < 3 else 9), dbg)
    sg = dict(RING=sRING, P=sP, EAT=sEAT, C0=sC0, T=sT, B=sB, NB=sNB, WUN=9, PN=N, EN=E if 'noea' not in X else 0, SC=" nt" if "pnt" in X else "", ES=" nt" if "eant" in X else " sc1" if "easc" in X else "")
    L = Loop(a, sg, ("prio", "wu"))
    st(1)
    a(f"s_waitcnt vmcnt({NW1})")
    a("K_havrec:")
    st(2)
    for k in range(4): a(f"v_cmp_gt_u32 s[{62+2*k}:{63+2*k}], -3, v{RC+k}")
    a(f"v_cmp_eq_u32 vcc, -2, v{RC}")
    for k in range(4): a(f"s_bcnt1_i32_b64 s{86+k}, s[{62+2*k}:{63+2*k}]")
    a(f"s_lshl_b32 s{sT}, s{sG}, 2"); a(f"s_add_u32 s{sT}, s{sT}, {MISC}")
    a("s_add_u32 s87, s87, s86"); a("s_add_u32 s88, s88, s87"); a("s_add_u32 s89, s89, s88")
    a(f"v_mov_b32 v125, s{sT}"); a("v_mov_b32 v126, s89")
    a("s_mov_b64 exec, 1")
    a("ds_add_rtn_u32 v127, v125, v126")
    a("s_mov_b64 exec, -1")
    a("s_cbranch_vccz K_nomark")
    a(f"v_bfe_u32 v122, v0, 3, 5"); a("v_lshlrev_b32 v122, v122, 1")
    a("s_mov_b64 exec, vcc")
    a("ds_or_b32 v125, v122 offset:8")
    a("s_mov_b64 exec, -1")
    a("K_nomark:")
    for k in range(4):
        a(f"v_mbcnt_lo_u32_b32 v{112+k}, s{62+2*k}, 0")
        a(f"v_mbcnt_hi_u32_b32 v{112+k}, s{63+2*k}, v{112+k}")
    a("v_mov_b32 v124, 0x3f80")
    a(f"s_movk_i32 s93, {CAP}"); a(f"s_movk_i32 s92, {PS}"); a(f"s_add_u32 s91, s{sSB}, {3*PS}")
    def prep(k):
        a(f"v_and_b32 v{116+2*(k%2)}, 0x3fff, v{RC+k}")
        a(f"v_lshrrev_b32 v{117+2*(k%2)}, 19, v{RC+k}")
        a(f"v_add_u32 v{117+2*(k%2)}, v{vCH}, v{117+2*(k%2)}")
        a(f"v_bfe_u32 v{120+k%2}, v{RC+k}, 14, 3")
        a(f"v_lshl_add_u32 v{120+k%2}, v{120+k%2}, 1, s{sSB}")
        a(f"v_bfe_u32 v122, v{RC+k}, 17, 2")
        a(f"v_mad_u32_u24 v{120+k%2}, v122, s92, v{120+k%2}")
    prep(0); prep(1)
    a("s_waitcnt lgkmcnt(0)")
    a("v_readfirstlane_b32 s94, v127")
    a(f"s_cmp_eq_u32 s{sWIN}, 0")
    a(f"s_cselect_b32 s{sBASE}, s94, s{sBASE}")
    a(f"s_sub_u32 s94, s{sBASE}, s{sWIN}")
    a("s_add_u32 s95, s94, s86"); a("s_add_u32 s96, s94, s87"); a("s_add_u32 s97, s94, s88")
    for k in range(4):
        a(f"v_add_u32 v{112+k}, s{94+k}, v{112+k}")
        a(f"v_cmp_gt_u32 vcc, s93, v{112+k}")
        a(f"s_and_b64 exec, vcc, s[{62+2*k}:{63+2*k}]")
        a(f"s_cbranch_execz K_x{k}")
        if k > 1: prep(k)
        a(f"v_lshl_add_u32 v122, v{112+k}, 3, s91")
        a(f"v_lshl_add_u32 v123, v{112+k}, 4, v{120+k%2}")
        a(f"ds_write_b64 v122, {vr(116+2*(k%2),2)}")
        a(f"ds_write_b16 v123, v124")
        a(f"K_x{k}:")
        a("s_mov_b64 exec, -1")
    st(3)
    a(f"v_mov_b32 v125, {MISC}")
    for i in (1, 3, 5): a(f"v_mov_b32 v{116+i}, v{L4V+i}")
    a(f"s_cmp_eq_u32 s{sFIRST}, 0")
    a("s_cbranch_scc1 K_pb1")
    a(f"s_mov_b32 s11, {SPIN}")
    a("K_pb:")
    a("s_waitcnt vmcnt(0)")
    a(f"v_cmp_ne_u32 vcc, 1, v{vPR}")
    a("s_cbranch_vccz K_pb1")
    a(f"buffer_load_dword v{vPR}, v{vPOLL}, {sr(sWS,4)}, s7 offen sc0 sc1")
    a("s_sub_u32 s11, s11, 1"); a("s_cbranch_scc0 K_pb")
    a("K_pb1:")
    a("s_waitcnt lgkmcnt(0)")
    a("s_barrier")
    st(4)
    a("s_setprio 2")
    a("ds_read_b128 v[112:115], v125")
    for x in L.rdL(0) + L.rdL(BS, 116): a(x)
    a(f"v_mov_b32 v124, v{vQT}")
    a(f"s_lshl_b32 s11, s{sWC}, 11"); a(f"s_add_u32 s11, s11, {WS_W3}")
    for t in range(2): a(f"buffer_load_dwordx4 {vr(W3+4*t,4)}, v{vL16}, {sr(sWS,4)}, s11 offen offset:{t*1024} sc1")
    a(f"s_mov_b32 s{sP+2}, {sg['PN']}"); a(f"s_mov_b32 s{sEAT+2}, {sg['EN']}")
    def dma(slot, lv):
        for x, y in L.dma(slot, lv):
            if x: a(x); a("s_nop 0")
            a(y)
    a("s_waitcnt lgkmcnt(3)")
    dma(0, L4V)
    for i in range(4): a(f"v_readfirstlane_b32 s{94+i}, v{112+i}")
    a("s_waitcnt lgkmcnt(0)")
    a("s_barrier")
    dma(1, 116)
    a(f"s_max_u32 s{sNWIN}, s94, s95")
    a(f"s_cmp_eq_u32 s{sG}, 0"); a("s_cselect_b32 s94, s94, s95")
    a(f"s_sub_i32 s{sCNT}, s94, s{sWIN}"); a(f"s_max_i32 s{sCNT}, s{sCNT}, 0"); a(f"s_min_i32 s{sCNT}, s{sCNT}, {CAP}")
    a(f"s_add_u32 s{sNB}, s{sCNT}, 31"); a(f"s_lshr_b32 s{sNB}, s{sNB}, 5")
    a(f"s_cmp_eq_u32 s{sFIRST}, 0")
    a("s_cbranch_scc1 K_nou")
    a(f"s_mov_b32 s{sM0}, s96"); a(f"s_mov_b32 s{sM1}, s97")
    for t in range(2):
        for q in range(3): a(f"ds_read_b64_tr_b16 {vr(Q+8*t+2*q,2)}, v124 offset:{t*3072+q*256}")
    a(f"s_add_u32 s10, s10, {WS_WU2}"); a("s_mov_b32 s9, 0")
    for i in range(32): a(f"v_mov_b32 v{ACC+i}, 0")
    a("s_waitcnt lgkmcnt(0)")
    a("s_mov_b32 exec_hi, 0")
    for t in range(2): a(f"v_mov_b32 v{Q+8*t+4}, 0"); a(f"v_mov_b32 v{Q+8*t+5}, 0")
    a("s_mov_b64 exec, -1")
    a("K_nou:")
    for x in L.rdO(0): a(x)
    for i in range(8): a(f"v_mov_b32 v{MSG+i}, 0")
    for i in range(8): a(f"v_mov_b32 v{S+i}, 0")
    a(f"s_mov_b32 s{sB}, 0")
    a("s_waitcnt vmcnt(5)")
    st(5)
    a(f"s_cmp_eq_u32 s{sNB}, 0")
    a("s_cbranch_scc1 K_rend")
    for x in [L.rdE(0)] + L.rdP(0, 0): a(x)
    a("s_setprio 1")
    a("s_waitcnt lgkmcnt(0)")
    for x in L.M1(0): a(x)
    a("s_nop 7"); a("s_nop 3")
    a("K_loop:")
    L.block(0, PL1)
    a("s_cbranch_scc1 K_lend")
    L.block(1, PL1)
    a("s_cbranch_scc0 K_loop")
    a("K_lend:")
    a("s_nop 1")
    for x in L.M2(1): a(x)
    a("K_rend:")
    st(6)
    a(f"s_mov_b32 s{sFIRST}, 0")
    a(f"s_add_u32 s{sWIN}, s{sWIN}, {CAP}")
    a(f"s_cmp_lt_u32 s{sWIN}, s{sNWIN}")
    a("s_cbranch_scc1 K_again")
    a(f"s_or_b32 s{sT}, s{sM0}, s{sM1}")
    a("s_cbranch_scc0 K_final")
    a(f"s_mov_b32 s{sWIN}, 0")
    a(f"s_add_u32 s{sSUB}, s{sSUB}, 1")
    a(f"s_cmp_lt_u32 s{sSUB}, 5")
    a("s_cbranch_scc1 K_samech")
    a(f"s_bitset0_b32 s{sM0}, s{sCH}")
    a(f"s_bitset0_b32 s{sM1}, s{sCH}")
    a(f"s_mov_b32 s{sSUB}, 0")
    a(f"s_or_b32 s{sT}, s{sM0}, s{sM1}")
    a("s_cbranch_scc0 K_final")
    a("K_samech:")
    a(f"s_ff1_i32_b32 s{sCH}, s{sT}")
    a("K_again:")
    a("s_nop 7"); a("s_nop 7")
    a("s_waitcnt vmcnt(0) lgkmcnt(0)")
    a("s_barrier")
    zero_struct(a, 56); loop_addr(a, 52)
    a("s_waitcnt lgkmcnt(0)")
    a("s_barrier")
    a(f"s_cmp_lg_u32 s{sSUB}, -1")
    a("s_cbranch_scc1 K_raw")
    a(f"buffer_load_dwordx4 {vr(RC,4)}, v{vT16}, {sr(sWS,4)}, s{sCELL} offen sc1")
    a("s_waitcnt vmcnt(0)")
    a("s_branch K_havrec")
    a("K_raw:")
    a(f"s_mul_i32 s{sT}, s{sCH}, {CHE*4}")
    a(f"s_lshl_b32 s94, s{sSUB}, 12")
    a(f"s_add_u32 s{sT}, s{sT}, s94")
    a(f"buffer_load_dwordx4 {vr(RC,4)}, v{vT16}, {sr(sSRC,4)}, s{sT} offen")
    a(f"buffer_load_dwordx4 v[64:67], v{vT16}, {sr(sDST,4)}, s{sT} offen")
    a(f"s_mul_i32 s95, s{sCH}, {CHE}")
    a(f"v_mov_b32 v{vCH}, s95")
    a(f"s_cmp_eq_u32 s{sG}, 0")
    a(f"s_cselect_b32 s95, s{sM0}, s{sM1}")
    a(f"s_bitcmp1_b32 s95, s{sCH}")
    a(f"s_cselect_b32 s95, s{sGB}, -1")
    a(f"v_add_u32 v68, s94, v{vT16}")
    a("v_lshrrev_b32 v68, 2, v68")
    a(f"s_movk_i32 s96, {CHE}")
    a("v_cmp_gt_u32 s[62:63], s96, v68")
    a("s_waitcnt vmcnt(0)")
    for k in range(4):
        a(f"v_and_b32 v69, 0x1ff, v{64+k}")
        a("v_cmp_eq_u32 vcc, s95, v69")
        a(f"v_lshrrev_b32 v69, 9, v{64+k}")
        a(f"v_lshl_or_b32 v{RC+k}, v69, 14, v{RC+k}")
        a(f"v_add_u32 v69, {k}, v68")
        a(f"v_lshl_or_b32 v{RC+k}, v69, 19, v{RC+k}")
        a("s_and_b64 vcc, vcc, s[62:63]")
        a(f"v_cndmask_b32 v{RC+k}, -1, v{RC+k}, vcc")
    a("s_branch K_havrec")
    def wu(k, so):
        for f in range(4): a(f"buffer_load_dwordx4 {vr(WU+16*k+4*f,4)}, v{vL16}, {sr(sWS,4)}, {so} offen offset:{f*1024} sc1")
    a("L_wu:")
    a("s_lshl_b32 s11, s9, 12"); a("s_add_u32 s11, s11, s10"); a("s_add_u32 s9, s9, 1")
    for k in range(4):
        if k < 3: a(f"s_cmp_lg_u32 s9, {k+1}"); a(f"s_cbranch_scc1 L_wu{k}")
        wu(k, "s11"); a("s_branch L_wub")
        if k < 3: a(f"L_wu{k}:")
    a("K_final:")
    a("s_cmp_eq_u32 s9, 4"); a("s_cbranch_scc1 K_fwu")
    for k in range(4): wu(k, "s10"); a("s_add_u32 s10, s10, 4096")
    a("K_fwu:")
    a(f"v_add_u32 v1, {TAB}, v{vL16}")
    for i in range(3): a(f"ds_read_b128 {vr(104+4*i,4)}, v1 offset:{i*1024}")
    a("s_lshl_b32 s10, s2, 9"); a(f"s_lshl_b32 s94, s{sW}, 6"); a("s_add_u32 s10, s10, s94")
    a(f"v_mov_b32 v2, {hex(LOG2E_NEG)}")
    a(f"v_add_u32 v6, s{sRING}, v{vL16}")
    for i in range(8): a(f"v_cvt_pk_bf16_f32 v{D+i}, v{ACC+2*i}, v{ACC+2*i+1}")
    a("s_waitcnt vmcnt(0) lgkmcnt(0)")
    a(f"v_add_u32 v107, s{sRING}, v107"); a(f"v_add_u32 v5, s{sRING}, v111")
    for tm in range(1, 4): a(f"v_xor_b32 v{9+tm}, {tm*32}, v107")
    a(f"ds_write_b128 v107, {vr(D,4)}"); a(f"ds_write_b128 v10, {vr(D+4,4)}")
    for i in range(8, 16): a(f"v_cvt_pk_bf16_f32 v{D+i}, v{ACC+2*i}, v{ACC+2*i+1}")
    a(f"ds_write_b128 v11, {vr(D+8,4)}"); a(f"ds_write_b128 v12, {vr(D+12,4)}")
    a("s_waitcnt lgkmcnt(0)")
    a("s_barrier")
    st(7)
    FB = [16, 48, 116]
    def rdF(nt):
        for T in range(8):
            if nt > 0 and T == 7: a("s_waitcnt lgkmcnt(14)")
            a(f"ds_read_b128 {vr(FB[nt]+4*T,4)}, v{(108 if T%2==0 else 112)+nt} offset:{(T>>1)*RINGW}")
    def mmF(nt): return [mf16(UA+8*nt+4*u, WU+8*T+4*u, FB[nt]+4*T, UA+8*nt+4*u) for T in range(8) for u in range(2)]
    T0 = 80
    def silu(nt, mm):
        o = UA + 8*nt; mm = list(mm)
        for i in range(8):
            if mm: a(mm.pop(0))
            a(f"v_exp_f32 v{T0+i}, v{o+i}")
        for i in range(8): a(f"v_fma_f32 v{T0+i}, v{T0+i}, v2, v2")
        for i in range(8):
            if mm: a(mm.pop(0))
            a(f"v_rcp_f32 v{T0+i}, v{T0+i}")
        for i in range(8): a(f"v_mul_f32 v{o+i}, v{o+i}, v{T0+i}")
        for i in range(4): a(f"v_cvt_pk_bf16_f32 v{88+4*nt+i}, v{o+2*i}, v{o+2*i+1}")
        a(f"ds_write_b128 v5, {vr(88+4*nt,4)} offset:{4096+nt*1024}")
        a(f"ds_read_b128 {vr(148+4*nt,4)}, v6 offset:{4096+nt*1024}")
    rdF(0); rdF(1)
    m = mmF(0)
    for T in range(8):
        a(f"s_waitcnt lgkmcnt({15-T})"); a(m[2*T]); a(m[2*T+1])
    rdF(2)
    a("s_waitcnt lgkmcnt(8)")
    silu(0, mmF(1))
    a("s_waitcnt lgkmcnt(2)")
    silu(1, mmF(2))
    a("s_waitcnt lgkmcnt(2)")
    a(f"buffer_store_dwordx4 v[148:151], v104, {sr(sOUT,4)}, s10 offen{OSC}")
    st(8)
    silu(2, [])
    a("s_waitcnt lgkmcnt(2)")
    a(f"buffer_store_dwordx4 v[152:155], v105, {sr(sOUT,4)}, s10 offen{OSC}")
    a("s_waitcnt lgkmcnt(0)")
    a(f"buffer_store_dwordx4 v[156:159], v106, {sr(sOUT,4)}, s10 offen{OSC}")
    if dbg:
        a("s_waitcnt vmcnt(0)")
        st(10)
        a("s_memtime s[98:99]\ns_waitcnt lgkmcnt(0)\ns_sub_u32 s82, s98, s100")
        a(f"s_mov_b32 s83, s{sNB}\ns_mov_b32 s71, s70")
        for i in range(16): a(f"v_mov_b32 v{16+i}, s{71+i if i < 15 else 70}")
        a(f"s_lshl_b32 s16, s2, 3\ns_add_u32 s16, s16, s{sW}\ns_lshl_b32 s16, s16, 6\ns_add_u32 s16, s16, {WS_DBG}")
        a("v_mov_b32 v3, 0")
        for i in range(4): a(f"buffer_store_dwordx4 {vr(16+4*i,4)}, v3, {sr(sWS,4)}, s16 offen offset:{16*i}")
        if "spin" in X:
            a("K_spin:\ns_memrealtime s[98:99]\ns_waitcnt lgkmcnt(0)\ns_sub_u32 s98, s98, s70\ns_cmp_lt_u32 s98, 6000\ns_cbranch_scc1 K_spin")
        if "dbg2" in X:
            a("s_load_dwordx2 s[20:21], s[0:1], 56\ns_waitcnt lgkmcnt(0)")
            srd(a, 24, 20, 0, 256)
            a("v_not_b32 v31, v31\ns_mov_b64 exec, 1")
            for i in range(1, 16): a(f"buffer_atomic_umax v{16+i}, v3, s[24:27], 0 offen offset:{4*i} sc1")
    a("K_end:")
    a("s_endpgm")
    hdr = open("standalone__mpnn_edge_mlp__graph.s.ref").read().split("; Override launch")[0]
    s = hdr + f"; @launch grid=(256,1,1) block=(512,1,1) lds={LDS}\n"
    s += f'.amdgcn_target "amdgcn-amd-amdhsa--gfx950"\n.text\n.globl {NAME}\n.p2align 8\n.type {NAME},@function\n' + a.text()
    s += '.section .rodata,"a"\n.p2align 6\n' + desc(NAME, NV)
    return s
if __name__ == "__main__":
    out = [x for x in sys.argv[1:] if not x.startswith("--")][0]
    open(out, "w").write(gen("--dbg" in sys.argv))
```
